```python
import torch

def _softmax(x, axis=-1):
    return torch.softmax(x, dim=axis)
def _gelu(x):
    return torch.nn.functional.gelu(x, approximate="tanh")
def _silu(x):
    return torch.nn.functional.silu(x)
def _sigmoid(x):
    return torch.sigmoid(x)
def _layernorm(x, axis=-1, eps=1e-5):
    m = x.mean(dim=axis, keepdim=True)
    v = x.var(dim=axis, keepdim=True, unbiased=False)
    return (x - m) / torch.sqrt(v + eps)
def _scatter_add(tgt, idx, src, axis=0):
    return tgt.clone().index_add_(axis, idx, src)
def _segment_sum(src, seg, n):
    out = torch.zeros((n,) + src.shape[1:], dtype=src.dtype)
    return out.index_add_(0, seg, src)
def _pad(x, pw):
    flat = tuple(v for pair in reversed(pw) for v in pair)
    return torch.nn.functional.pad(x, flat)

kernel_name = 'concat_heads__compressed_kv_cla__spectral_gfnet__prompt'

def setup_inputs():

    _w = (lambda a: (lambda t: t.to(torch.bfloat16) if t.is_floating_point() else t)(torch.as_tensor(a)))
    def _A_setup():
        B, H, Sq, Sk, D, M = 1, 32, 2048, 2048, 128, 576
        Dc = 4 * D
        return {
            "x": _w((lambda *s: torch.randn(*s, dtype=torch.bfloat16) * 3.2)(B, Sq, M)),
            "c_kv": _w((lambda *s: torch.randn(*s, dtype=torch.bfloat16) * 0.05)(B, Sk, Dc)),
            "w_q": _w((lambda *s: torch.randn(*s, dtype=torch.bfloat16) * 3.2)(M, H, D) * (M ** -0.5)),
            "w_uk": _w((lambda *s: torch.randn(*s, dtype=torch.bfloat16) * 3.2)(Dc, H, D) * (Dc ** -0.5)),
            "w_uv": _w((lambda *s: torch.randn(*s, dtype=torch.bfloat16) * 0.05)(Dc, H, D) * (Dc ** -0.5)),
            "w_o": _w((lambda *s: torch.randn(*s, dtype=torch.bfloat16) * 0.05)(H, D, M) * ((H * D) ** -0.5)),
        }
    _A_in = _A_setup()

    def _B_setup():
        B, S, D = 1, 2048, 576
        Df = D // 2 + 1
        return {
            "x": _w((lambda *s: torch.randn(*s, dtype=torch.bfloat16) * 0.05)(B, S, D)),
            "w_r": _w((lambda *s: torch.randn(*s, dtype=torch.bfloat16) * 0.05)(S, Df) * 0.02),
            "w_i": _w((lambda *s: torch.randn(*s, dtype=torch.bfloat16) * 0.05)(S, Df) * 0.02),
        }
    _B_in = _B_setup()

    return {
        "A_x": _A_in["x"],
        "A_c_kv": _A_in["c_kv"],
        "A_w_q": _A_in["w_q"],
        "A_w_uk": _A_in["w_uk"],
        "A_w_uv": _A_in["w_uv"],
        "A_w_o": _A_in["w_o"],
        "B_x": _B_in["x"],
        "B_w_r": _B_in["w_r"],
        "B_w_i": _B_in["w_i"],
    }

def reference(A_x, A_c_kv, A_w_q, A_w_uk, A_w_uv, A_w_o, B_x, B_w_r, B_w_i):
    def _A_ref(x, c_kv, w_q, w_uk, w_uv, w_o):
        B, Sq, M = x.shape[0], x.shape[1], x.shape[2]
        Sk = c_kv.shape[1]
        H, D = w_q.shape[1], w_q.shape[2]
        q = torch.einsum("bqm,mhd->bhqd", x, w_q)
        k = torch.einsum("bkc,chd->bhkd", c_kv, w_uk)
        v = torch.einsum("bkc,chd->bhkd", c_kv, w_uv)
        scores = torch.einsum("bhqd,bhkd->bhqk", q, k) * (D ** -0.5)
        off = Sk - Sq
        qi = torch.arange(Sq)[:, None]
        kj = torch.arange(Sk)[None, :]
        cmask = kj <= (qi + off)
        scores = torch.where(cmask[None, None], scores, -1e9)
        p = _softmax(scores, axis=-1)
        ctx = torch.einsum("bhqk,bhkd->bhqd", p, v)
        return torch.einsum("bhqd,hdm->bqm", ctx, w_o)

    def _B_ref(x, w_r, w_i):
        B, S, D = x.shape
        X = (lambda x, axes=(-2,-1): torch.fft.rfft2(x.float(), dim=axes))(x, axes=(-2, -1))
        W = w_r + 1j * w_i
        X = X * W
        y = (lambda x, s, axes=(-2,-1): torch.fft.irfft2(x, s=s, dim=axes).to(torch.bfloat16))(X, (S, D), axes=(-2, -1))
        return y

    a = _A_ref(A_x, A_c_kv, A_w_q, A_w_uk, A_w_uv, A_w_o)
    b = _B_ref(B_x, B_w_r, B_w_i)
    return torch.concatenate([a, b], axis=-1)
```

```python
import re

TRANS = ("v_exp_f32","v_log_f32","v_rcp_f32","v_rsq_f32","v_sqrt_f32","v_sin_f32","v_cos_f32")

def parse_regs(tok):
    tok = tok.strip()
    out = []
    m = re.fullmatch(r"-?(?:abs\()?([vsa])\[(\d+):(\d+)\]\)?", tok)
    if m:
        return [(m.group(1), i) for i in range(int(m.group(2)), int(m.group(3))+1)]
    m = re.fullmatch(r"-?(?:abs\()?([vsa])(\d+)\)?", tok)
    if m:
        return [(m.group(1), int(m.group(2)))]
    if tok in ("vcc","vcc_lo","vcc_hi"): return [("vcc",0)]
    if tok == "m0": return [("m0",0)]
    if tok == "exec": return [("exec",0)]
    return []

class Ins:
    def __init__(self, text):
        self.text = text
        t = text.split(";")[0].strip()
        self.label = None; self.op = None; self.ops = []
        if not t or t.startswith("."):
            self.kind = "none"; return
        if t.endswith(":"):
            self.kind = "label"; self.label = t[:-1]; return
        parts = t.split(None, 1)
        self.op = parts[0]
        rest = parts[1] if len(parts) > 1 else ""
        ops = [o.strip() for o in rest.split(",")] if rest else []
        self.mods = ""
        if ops:
            last = ops[-1].split()
            if len(last) > 1:
                ops[-1] = last[0]; self.mods = " ".join(last[1:])
        self.rawops = ops
        op = self.op
        self.defs = []; self.uses = []
        R = [parse_regs(o) for o in ops]
        if op.startswith("v_mfma"):
            self.kind = "mfma"
            self.passes = 8 if "32x32" in op else 4
            self.defs = R[0]; self.a = R[1]; self.b = R[2]; self.c = R[3]
            self.uses = R[1]+R[2]+R[3]
        elif op.startswith("v_cmp"):
            self.kind = "valu"; self.defs = R[0]; self.uses = sum(R[1:], [])
        elif op.startswith("v_readfirstlane") or op.startswith("v_readlane"):
            self.kind = "valu"; self.defs = R[0]; self.uses = sum(R[1:], [])
        elif op.startswith("v_permlane"):
            self.kind = "valu"; self.defs = R[0]+R[1]; self.uses = R[0]+R[1]
        elif op.startswith("v_"):
            self.kind = "valu"; self.defs = R[0]; self.uses = sum(R[1:], [])
            if op.startswith("v_fmac") or op.startswith("v_pk_fmac"): self.uses += R[0]
            if op.startswith("v_cndmask") and len(ops) == 3: self.uses += [("vcc",0)]
            if op.startswith("v_add_co") or op.startswith("v_addc_co") or op.startswith("v_sub_co"):
                self.defs = R[0] + R[1]; self.uses = sum(R[2:], [])
        elif op.startswith("ds_"):
            self.kind = "ds"
            if op.startswith("ds_read") or op.startswith("ds_bpermute") or op.startswith("ds_swizzle") or op.startswith("ds_permute"):
                self.defs = R[0]; self.uses = sum(R[1:], [])
            else:
                self.uses = sum(R, [])
        elif op.startswith("buffer_") or op.startswith("global_"):
            self.kind = "vmem"
            self.lds = " lds" in (" " + self.mods)
            if "load" in op and not self.lds:
                self.defs = R[0]; self.uses = sum(R[1:], [])
            elif "atomic" in op and "sc0" in self.mods:
                self.defs = R[0]; self.uses = sum(R, [])
            else:
                self.uses = sum(R, [])
            self.wide_store = ("store" in op) and ("x4" in op or "x3" in op)
            if self.wide_store: self.sdata = R[0] if op.startswith("buffer_") else R[1]
        elif op.startswith("s_"):
            self.kind = "salu"
            if op in ("s_nop",): self.n = int(ops[0], 0) + 1
            if op.startswith(("s_cmp","s_cbranch","s_branch","s_waitcnt","s_barrier","s_endpgm","s_nop","s_setprio","s_sleep")):
                self.uses = sum(R, [])
            else:
                self.defs = R[0] if R else []; self.uses = sum(R[1:], [])
        else:
            raise ValueError("unknown op: " + text)

class Asm:
    def __init__(self):
        self.lines = []
    def __call__(self, s):
        for l in s.split("\n"):
            l = l.strip()
            if l: self.lines.append(l)
    def label(self, name): self.lines.append(name + ":")

def _need(ins, st):
    need = 0
    def chk(reg, kind, dist):
        nonlocal need
        d = st.get(reg)
        if d and kind in d:
            need = max(need, dist - d[kind])
    k = ins.kind
    if k == "mfma":
        for r in ins.uses:
            chk(r, "valu", 2); chk(r, "trans", 2)
        for r in ins.a + ins.b:
            chk(r, "mfma8", 12); chk(r, "mfma4", 8)
        for r in ins.c:
            d = st.get(r)
            if d:
                for kk, dist in (("mfma8", 10), ("mfma4", 6)):
                    if kk in d:
                        if d.get(kk+"_id") != (tuple(ins.c), ins.passes):
                            need = max(need, dist - d[kk])
        chk(("exec",0), "valu_s", 4)
    elif k == "valu":
        istrans = ins.op in TRANS
        for r in ins.uses:
            if r[0] in "va":
                chk(r, "mfma8", 12); chk(r, "mfma4", 8)
                if not istrans: chk(r, "trans", 1)
                if ins.op.startswith(("v_readfirstlane","v_readlane")): chk(r, "valu", 1); chk(r, "trans", 1)
                if ins.op.startswith("v_permlane"): chk(r, "valu", 2); chk(r, "trans", 2)
                if "dpp" in ins.text or "row_" in ins.text: chk(r, "valu", 2); chk(r, "trans", 2)
            else:
                chk(r, "valu_s", 2)
        for r in ins.defs:
            if r[0] in "va":
                chk(r, "mfma8", 12); chk(r, "mfma4", 8)
                chk(r, "srcc8", 7); chk(r, "srcc4", 3)
                chk(r, "sdata", 2)
    elif k in ("ds", "vmem"):
        for r in ins.uses:
            if r[0] in "va":
                chk(r, "mfma8", 12); chk(r, "mfma4", 8)
            else:
                chk(r, "valu_s", 5)
        for r in ins.defs:
            chk(r, "mfma8", 12); chk(r, "mfma4", 8); chk(r, "srcc8", 7); chk(r, "srcc4", 3); chk(r, "sdata", 2)
        if k == "vmem" and ins.lds: chk(("m0",0), "salu_m0", 1)
    elif k == "salu":
        for r in ins.uses:
            chk(r, "valu_s", 3)
    return need

def _age(st, n):
    for r, d in list(st.items()):
        for kk in list(d.keys()):
            if kk.endswith("_id"): continue
            d[kk] += n
            if d[kk] > 24:
                del d[kk]; d.pop(kk+"_id", None)
        if not d: del st[r]

def _apply(ins, st):
    k = ins.kind
    if k == "mfma":
        for r in ins.c:
            st.setdefault(r, {})["srcc%d" % ins.passes] = 0
        for r in ins.defs:
            d = st.setdefault(r, {})
            for kk in ("valu","trans","mfma8","mfma4","mfma8_id","mfma4_id"): d.pop(kk, None)
            d["mfma%d" % ins.passes] = 0; d["mfma%d_id" % ins.passes] = (tuple(ins.defs), ins.passes)
    elif k == "valu":
        for r in ins.defs:
            d = st.setdefault(r, {})
            if r[0] in "va":
                for kk in ("valu","trans","mfma8","mfma4","mfma8_id","mfma4_id"): d.pop(kk, None)
                d["trans" if ins.op in TRANS else "valu"] = 0
            else:
                d["valu_s"] = 0
    elif k in ("ds","vmem"):
        for r in ins.defs:
            d = st.get(r)
            if d:
                for kk in ("valu","trans","mfma8","mfma4","mfma8_id","mfma4_id"): d.pop(kk, None)
        if k == "vmem" and getattr(ins, "wide_store", False):
            for r in ins.sdata: st.setdefault(r, {})["sdata"] = 0
    elif k == "salu":
        for r in ins.defs:
            if r == ("m0",0): st.setdefault(r, {})["salu_m0"] = 0
            else:
                d = st.get(r)
                if d: d.pop("valu_s", None)

def _merge(a, b):
    out = {}
    for st in (a, b):
        for r, d in st.items():
            o = out.setdefault(r, {})
            for kk, v in d.items():
                if kk.endswith("_id"):
                    if kk in o and o[kk] != v: o[kk] = None
                    else: o.setdefault(kk, v)
                else:
                    o[kk] = min(o.get(kk, 999), v)
    return out

import copy
def fix_hazards(lines):
    ins = [Ins(l) for l in lines]
    label_state = {}
    for it in range(3):
        out = []; st = {}; new_ls = {}
        changed = False
        for i in ins:
            if i.kind == "label":
                if i.label in label_state: st = _merge(st, label_state[i.label])
                out.append(i.text); continue
            if i.kind == "none":
                out.append(i.text); continue
            n = _need(i, st)
            if n > 0:
                out.append("s_nop %d" % (n-1)); _age(st, n)
            out.append(i.text)
            _age(st, 1)
            _apply(i, st)
            if i.kind == "salu" and i.op == "s_nop": _age(st, i.n - 1)
            if i.kind == "salu" and (i.op.startswith("s_cbranch") or i.op == "s_branch"):
                tgt = i.rawops[0]
                s2 = copy.deepcopy(st)
                new_ls[tgt] = _merge(new_ls[tgt], s2) if tgt in new_ls else s2
                if i.op == "s_branch": st = {}
        label_state = new_ls
    return out
```

```python
from gen_common import *

def kernel_attn(A):
    QF, O, S, P, FR = 0, 32, 96, 128, 144
    vM, vL, vLA, vMC = 176, 177, 178, 179
    T = 180
    vD, vOff, vLane16 = 200, 201, 202
    NFR = 8
    A("s_load_dwordx2 s[46:47], s[0:1], 88")
    A("v_lshrrev_b32 v1, 6, v0")
    A("v_readfirstlane_b32 s24, v1")
    A("s_cmp_ge_u32 s2, 256")
    A("s_cbranch_scc1 Lattn_exit")
    A("s_waitcnt lgkmcnt(0)")
    A("s_lshr_b32 s25, s24, 2")
    A("s_and_b32 s26, s24, 3")
    A("s_and_b32 s3, s2, 7")
    A("s_lshr_b32 s4, s2, 3")
    A("s_and_b32 s5, s4, 3")
    A("s_lshl_b32 s27, s3, 2")
    A("s_add_u32 s27, s27, s5")
    A("s_lshr_b32 s28, s2, 5")
    A("s_lshl_b32 s3, s27, 19")
    for d, off in ((8, WS_K), (12, WS_V), (16, WS_Q)):
        A(f"s_add_u32 s{d}, s46, {off}")
        A(f"s_addc_u32 s{d+1}, s47, 0")
        A(f"s_add_u32 s{d}, s{d}, s3")
        A(f"s_addc_u32 s{d+1}, s{d+1}, 0")
        A(f"s_mov_b32 s{d+2}, 0x80000")
        A(f"s_mov_b32 s{d+3}, 0x00020000")
    srd(A, 20, 46, 0x1000000, WS_C)
    A("s_mov_b32 s44, 0x3e0293ee")
    A(f"v_and_b32 v{T}, 63, v0")
    A(f"v_lshlrev_b32 v{vLane16}, 4, v{T}")
    A("s_lshl_b32 s3, s25, 14")
    A(f"v_add_u32 v{vLA}, s3, v{vLane16}")
    A("s_lshl_b32 s3, s24, 12")
    A(f"v_add_u32 v{vOff}, s3, v{vLane16}")
    A(f"v_and_b32 v{T+1}, 31, v0")
    A(f"v_bfe_u32 v{T+2}, v0, 5, 1")
    A(f"v_lshlrev_b32 v{T+2}, 2, v{T+2}")
    A(f"v_sub_u32 v{vD}, v{T+1}, v{T+2}")
    A("s_lshl_b32 s3, s25, 1")
    A("s_sub_u32 s3, s3, s26")
    A("s_lshl_b32 s3, s3, 5")
    A(f"v_subrev_u32 v{vD}, s3, v{vD}")
    A("s_sub_u32 s29, 15, s28")
    A("s_mov_b32 s30, 0")
    A("s_mov_b32 s34, 0")
    A("s_mov_b32 s31, 0")
    A("s_lshl_b32 s32, s24, 12")
    def dma(soff):
        A("s_mov_b32 m0, s32")
        for i in range(4):
            A(f"buffer_load_dwordx4 v{vOff}, s[8:11], {soff} offen offset:{i*1024} lds")
        A("s_add_u32 m0, s32, 32768")
        for i in range(4):
            A(f"buffer_load_dwordx4 v{vOff}, s[12:15], {soff} offen offset:{i*1024} lds")
    def init_tile():
        A("s_lshl_b32 s3, s29, 2")
        A("s_add_u32 s3, s3, s26")
        A("s_lshl_b32 s3, s3, 13")
        for ks in range(8):
            A(f"buffer_load_dwordx4 {v(QF+4*ks,4)}, v{vLane16}, s[16:19], s3 offen offset:{ks*1024}" if ks < 4 else
              f"buffer_load_dwordx4 {v(QF+4*ks,4)}, v{T+3}, s[16:19], s3 offen offset:{(ks-4)*1024}")
        for r in range(64): A(f"v_mov_b32 v{O+r}, 0")
        A(f"v_mov_b32 v{vM}, 0xf149f2ca")
        A(f"v_mov_b32 v{vL}, 0")
    A(f"v_add_u32 v{T+3}, 4096, v{vLane16}")
    A("s_mov_b32 s33, 0")
    dma("s33")
    A("s_xor_b32 s32, s32, 0x10000")
    init_tile()

    def compute(masked):
        cnt = [0]
        def fr():
            r = FR + 4*(cnt[0] % NFR); cnt[0] += 1; return r
        seq = [(kb, ks) for kb in range(2) for ks in range(8)]
        regs = []
        PRE = 6
        def rdK(n):
            kb, ks = seq[n]; r = fr(); regs.append(r)
            A(f"ds_read_b128 {v(r,4)}, v{vLA} offset:{kb*8192+ks*1024}")
        for n in range(PRE): rdK(n)
        for n in range(16):
            kb, ks = seq[n]
            outstanding = min(16, n+PRE) - n - 1
            A(f"s_waitcnt lgkmcnt({outstanding})")
            c = "0" if ks == 0 else v(S+16*kb,16)
            A(f"{MFMA} {v(S+16*kb,16)}, {v(regs[n],4)}, {v(QF+4*ks,4)}, {c}")
            if n + PRE < 16: rdK(n+PRE)
        seqv = [(kb, dt, t) for kb in range(2) for t in range(2) for dt in range(4)]
        regsv = []
        def rdV(n):
            kb, dt, t = seqv[n]; r = fr(); regsv.append(r)
            A(f"ds_read_b128 {v(r,4)}, v{vLA} offset:{32768+kb*8192+(2*dt+t)*1024}")
        for n in range(PRE): rdV(n)
        if masked:
            for kb in range(2):
                for r in range(16):
                    off = (r&3) + 8*(r>>2) + 32*kb
                    A(f"v_cmp_gt_i32 vcc, {off}, v{vD}")
                    A(f"v_cndmask_b32 v{S+16*kb+r}, v{S+16*kb+r}, v{T+4}, vcc")
        A(f"v_max3_f32 v{T}, v{S}, v{S+1}, v{S+2}")
        for r in range(3, 31, 2):
            A(f"v_max3_f32 v{T}, v{T}, v{S+r}, v{S+r+1}")
        A(f"v_max_f32 v{T}, v{T}, v{S+31}")
        A(f"v_mov_b32 v{T+1}, v{T}")
        A(f"v_permlane32_swap_b32 v{T}, v{T+1}")
        A(f"v_max3_f32 v{T}, v{T}, v{T+1}, v{vM}")
        A(f"v_cmp_gt_f32 vcc, v{T}, v{vM}")
        lab = f"Lattn_nors{'m' if masked else ''}"
        A(f"s_cbranch_vccz {lab}")
        A(f"v_sub_f32 v{T+1}, v{vM}, v{T}")
        A(f"v_mul_f32 v{T+1}, s44, v{T+1}")
        A(f"v_exp_f32 v{T+1}, v{T+1}")
        A(f"v_mul_f32 v{vL}, v{vL}, v{T+1}")
        for r in range(64): A(f"v_mul_f32 v{O+r}, v{O+r}, v{T+1}")
        A(f"v_mov_b32 v{vM}, v{T}")
        A.label(lab)
        A(f"v_mul_f32 v{vMC}, s44, v{vM}")
        for r in range(32):
            A(f"v_fma_f32 v{S+r}, v{S+r}, s44, -v{vMC}")
        for r in range(32):
            A(f"v_exp_f32 v{S+r}, v{S+r}")
        for r in range(32):
            A(f"v_add_f32 v{vL}, v{vL}, v{S+r}")
        for r in range(16):
            A(f"v_cvt_pk_bf16_f32 v{P+r}, v{S+2*r}, v{S+2*r+1}")
        for n in range(16):
            kb, dt, t = seqv[n]
            outstanding = min(16, n+PRE) - n - 1
            A(f"s_waitcnt lgkmcnt({outstanding})")
            A(f"{MFMA} {v(O+16*dt,16)}, {v(regsv[n],4)}, {v(P+8*kb+4*t,4)}, {v(O+16*dt,16)}")
            if n + PRE < 16: rdV(n+PRE)

    A(f"v_mov_b32 v{T+4}, 0xf149f2ca")
    A.label("Lattn_loop")
    A("s_waitcnt vmcnt(0)")
    A("s_barrier")
    A("s_cmp_lt_u32 s30, s29")
    A("s_cbranch_scc0 Lattn_last")
    A("s_add_u32 s33, s30, 1")
    A("s_lshl_b32 s33, s33, 15")
    dma("s33")
    A("s_xor_b32 s32, s32, 0x10000")
    compute(False)
    A("s_add_u32 s30, s30, 1")
    A(f"v_xor_b32 v{vLA}, 0x10000, v{vLA}")
    A("s_xor_b32 s31, s31, 0x10000")
    A("s_branch Lattn_loop")
    A.label("Lattn_last")
    A("s_cmp_eq_u32 s34, 0")
    A("s_cbranch_scc0 Lattn_nodma")
    A("s_mov_b32 s33, 0")
    dma("s33")
    A("s_xor_b32 s32, s32, 0x10000")
    A.label("Lattn_nodma")
    compute(True)
    A(f"v_mov_b32 v{T}, v{vL}")
    A(f"v_mov_b32 v{T+1}, v{vL}")
    A(f"v_permlane32_swap_b32 v{T}, v{T+1}")
    A(f"v_add_f32 v{vL}, v{T}, v{T+1}")
    A("s_barrier")
    A(f"v_lshrrev_b32 v{T+2}, 1, v{vLane16}")
    A("s_lshl_b32 s3, s24, 9")
    A("s_add_u32 s3, s3, 131072")
    A(f"v_add_u32 v{T+2}, s3, v{T+2}")
    A(f"v_mov_b32 v{T+6}, v{vM}")
    A(f"v_mov_b32 v{T+7}, v{vL}")
    A(f"ds_write_b64 v{T+2}, {v(T+6,2)}")
    A("s_lshl_b32 s3, s24, 13")
    A("s_add_u32 s3, s3, s31")
    A(f"v_add_u32 v{T+3}, s3, v{vLane16}")
    A("s_cmp_eq_u32 s25, 0")
    A("s_cbranch_scc0 Lattn_w1")
    for k in range(8): A(f"ds_write_b128 v{T+3}, {v(O+32+4*k,4)} offset:{k*1024}")
    A("s_branch Lattn_w2")
    A.label("Lattn_w1")
    for k in range(8): A(f"ds_write_b128 v{T+3}, {v(O+4*k,4)} offset:{k*1024}")
    A.label("Lattn_w2")
    A("s_waitcnt lgkmcnt(0)")
    A("s_barrier")
    A(f"v_xor_b32 v{T+2}, 2048, v{T+2}")
    A(f"v_xor_b32 v{T+3}, 32768, v{T+3}")
    A(f"ds_read_b64 {v(T+6,2)}, v{T+2}")
    for k in range(8): A(f"ds_read_b128 {v(S+4*k,4)}, v{T+3} offset:{k*1024}")
    A("s_waitcnt lgkmcnt(0)")
    A(f"v_max_f32 v{T}, v{vM}, v{T+6}")
    A(f"v_sub_f32 v{T+1}, v{vM}, v{T}")
    A(f"v_sub_f32 v{T+5}, v{T+6}, v{T}")
    A(f"v_mul_f32 v{T+1}, s44, v{T+1}")
    A(f"v_mul_f32 v{T+5}, s44, v{T+5}")
    A(f"v_exp_f32 v{T+1}, v{T+1}")
    A(f"v_exp_f32 v{T+5}, v{T+5}")
    A(f"v_mul_f32 v{T+8}, v{vL}, v{T+1}")
    A(f"v_fma_f32 v{T+8}, v{T+7}, v{T+5}, v{T+8}")
    A(f"v_rcp_f32 v{T+8}, v{T+8}")
    A(f"v_mul_f32 v{T+1}, v{T+1}, v{T+8}")
    A(f"v_mul_f32 v{T+5}, v{T+5}, v{T+8}")
    A("s_lshl_b32 s3, s29, 2")
    A("s_add_u32 s3, s3, s26")
    A("s_lshl_b32 s3, s3, 5")
    A("s_add_u32 s3, s3, s27")
    A("s_lshl_b32 s3, s3, 13")
    A("s_lshl_b32 s4, s25, 12")
    A("s_add_u32 s3, s3, s4")
    def fin(ob):
        for k in range(4):
            for j in range(8):
                A(f"v_mul_f32 v{S+8*k+j}, v{S+8*k+j}, v{T+5}")
                A(f"v_fma_f32 v{S+8*k+j}, v{ob+8*k+j}, v{T+1}, v{S+8*k+j}")
            for j in range(4):
                A(f"v_cvt_pk_bf16_f32 v{P+4*k+j}, v{S+8*k+2*j}, v{S+8*k+2*j+1}")
            A(f"buffer_store_dwordx4 {v(P+4*k,4)}, v{vLane16}, s[20:23], s3 offen offset:{k*1024}")
    A("s_cmp_eq_u32 s25, 0")
    A("s_cbranch_scc0 Lattn_f1")
    fin(O)
    A("s_branch Lattn_f2")
    A.label("Lattn_f1")
    fin(O+32)
    A.label("Lattn_f2")
    A("s_cmp_eq_u32 s34, 1")
    A("s_cbranch_scc1 Lattn_exit")
    A("s_mov_b32 s34, 1")
    A("s_mov_b32 s29, s28")
    A("s_mov_b32 s30, 0")
    A(f"v_xor_b32 v{vLA}, 0x10000, v{vLA}")
    A("s_xor_b32 s31, s31, 0x10000")
    A(f"v_add_u32 v{T+3}, 4096, v{vLane16}")
    init_tile()
    A("s_branch Lattn_loop")
    A.label("Lattn_exit")
    A("s_endpgm")
```

```python
import sys
from asmlib import Asm, fix_hazards

NAME = "concat_heads__compressed_kv_cla__spectral_gfnet__prompt"
WS_Q, WS_K, WS_V, WS_C = 0x0, 0x1000000, 0x2000000, 0x3000000
WS_X1 = 0x4000000
WS_Y  = 0x4400000
WS_WP = 0x4800000

def v(a, n=1):
    return f"v{a}" if n == 1 else f"v[{a}:{a+n-1}]"
def s(a, n=1):
    return f"s{a}" if n == 1 else f"s[{a}:{a+n-1}]"

MFMA = "v_mfma_f32_32x32x16_bf16"

def srd(A, d, base, nbytes, off=None):
    if off:
        A(f"s_add_u32 s{d}, s{base}, {off}")
        A(f"s_addc_u32 s{d+1}, s{base+1}, 0")
    else:
        A(f"s_mov_b32 s{d}, s{base}")
        A(f"s_mov_b32 s{d+1}, s{base+1}")
    A(f"s_mov_b32 s{d+2}, {nbytes}")
    A(f"s_mov_b32 s{d+3}, 0x00020000")

HEADER = open("cdna_kernels/%s.s.ref" % NAME).read().split("; Override launch geometry")[0]

def emit_file(kernels, path):
    out = [HEADER.rstrip()]
    for (label, fn, grid, block, lds, nv) in kernels:
        out.append(f"; @launch kernel={label} grid=({grid},1,1) block=({block},1,1) lds={lds}")
    out.append('.amdgcn_target "amdgcn-amd-amdhsa--gfx950"')
    out.append(".text")
    seen = set()
    for (label, fn, grid, block, lds, nv) in kernels:
        if label in seen: continue
        seen.add(label)
        A = Asm(); fn(A)
        out.append(f".globl {label}\n.p2align 8\n.type {label},@function\n{label}:")
        out += ["    " + l if not l.endswith(":") else l for l in fix_hazards(A.lines)]
    out.append('.section .rodata,"a"')
    seen = set()
    for (label, fn, grid, block, lds, nv) in kernels:
        if label in seen: continue
        seen.add(label)
        out.append(f""".p2align 6
.amdhsa_kernel {label}
  .amdhsa_next_free_vgpr {nv}
  .amdhsa_next_free_sgpr 102
  .amdhsa_accum_offset {nv}
  .amdhsa_group_segment_fixed_size 0
  .amdhsa_kernarg_size 96
  .amdhsa_user_sgpr_count 2
  .amdhsa_user_sgpr_kernarg_segment_ptr 1
  .amdhsa_system_sgpr_workgroup_id_x 1
.end_amdhsa_kernel""")
    open(path, "w").write("\n".join(out) + "\n")
```

```python
from gen_common import *
import struct
def f2u(x): return struct.unpack("<I", struct.pack("<f", x))[0]

def kernel_dft(A, kind, tag):
    NKS = 36 if kind == "fwd" else 37
    CF = 0
    ACC = 148
    DF = 164
    NPF = 12
    T = 212
    IDX = 236
    exit_label = f"L{tag}_exit"
    if kind == "fwd":
        A("s_load_dwordx2 s[40:41], s[0:1], 48")
    else:
        A("s_load_dwordx2 s[42:43], s[0:1], 72")
    A("s_load_dwordx2 s[46:47], s[0:1], 88")
    A("v_lshrrev_b32 v1, 6, v0")
    A("v_readfirstlane_b32 s24, v1")
    A("s_cmp_ge_u32 s2, 36")
    A(f"s_cbranch_scc1 {exit_label}")
    A("s_waitcnt lgkmcnt(0)")
    A("s_lshl_b32 s3, s2, 2")
    A("s_add_u32 s3, s3, s24")
    A("s_lshr_b32 s25, s3, 3")
    A("s_and_b32 s26, s3, 7")
    A(f"v_and_b32 v{T}, 63, v0")
    A(f"v_and_b32 v{T+1}, 31, v0")
    A(f"v_bfe_u32 v{T+2}, v0, 5, 1")
    A("s_lshl_b32 s3, s25, 5")
    A(f"v_add_u32 v{T+3}, s3, v{T+1}")
    A("s_mov_b32 s36, %d" % f2u(1.0/576.0))
    A("s_movk_i32 s37, 576")
    if kind == "fwd":
        srd(A, 8, 40, 2048*1152)
        srd(A, 12, 46, 576*4096, WS_X1)
        A(f"v_cmp_lt_u32 vcc, 288, v{T+3}")
        A(f"v_subrev_u32 v{T+4}, 288, v{T+3}")
        A(f"v_cndmask_b32 v{T+4}, v{T+3}, v{T+4}, vcc")
        A(f"v_mov_b32 v{T+5}, 0")
        A(f"v_mov_b32 v{T+6}, 0x3e800000")
        A(f"v_cndmask_b32 v{T+5}, v{T+5}, v{T+6}, vcc")
        def mod576(dst, src):
            A(f"v_mul_hi_u32 v{T+10}, v{src}, s38")
            A(f"v_mul_lo_u32 v{T+10}, v{T+10}, s37")
            A(f"v_sub_u32 v{dst}, v{src}, v{T+10}")
        A("s_mov_b32 s38, 7456541")
        for jj in range(8):
            A(f"v_lshl_add_u32 v{T+7}, v{T+2}, 3, {jj}")
            A(f"v_mul_lo_u32 v{T+7}, v{T+7}, v{T+4}")
            mod576(IDX+jj, T+7)
        A(f"v_lshlrev_b32 v{T+7}, 4, v{T+4}")
        mod576(T+8, T+7)
        for ks in range(NKS):
            for jj in range(8):
                A(f"v_cvt_f32_u32 v{T+12+jj}, v{IDX+jj}")
                A(f"v_fma_f32 v{T+12+jj}, v{T+12+jj}, s36, v{T+5}")
                A(f"v_cos_f32 v{T+12+jj}, v{T+12+jj}")
                if ks < NKS-1:
                    A(f"v_add_u32 v{IDX+jj}, v{IDX+jj}, v{T+8}")
                    A(f"v_subrev_u32 v{T+9}, 576, v{IDX+jj}")
                    A(f"v_min_u32 v{IDX+jj}, v{IDX+jj}, v{T+9}")
            for p in range(4):
                A(f"v_cvt_pk_bf16_f32 v{CF+4*ks+p}, v{T+12+2*p}, v{T+13+2*p}")
    else:
        srd(A, 8, 46, 2048*1280, WS_Y)
        srd(A, 12, 42, 2048*2304)
        def mod576(dst, src):
            A(f"v_mul_hi_u32 v{T+10}, v{src}, s38")
            A(f"v_mul_lo_u32 v{T+10}, v{T+10}, s37")
            A(f"v_sub_u32 v{dst}, v{src}, v{T+10}")
        A("s_mov_b32 s38, 7456541")
        for q in range(4):
            A(f"v_lshl_add_u32 v{T+7}, v{T+2}, 2, {q}")
            A(f"v_mul_lo_u32 v{T+7}, v{T+7}, v{T+3}")
            mod576(IDX+q, T+7)
        A(f"v_lshlrev_b32 v{T+7}, 3, v{T+3}")
        mod576(T+8, T+7)
        amp2 = f2u(2.0/(2048*576)); amp1 = f2u(1.0/(2048*576))
        A(f"s_mov_b32 s39, {amp2}")
        for ks in range(NKS):
            for q in range(4):
                A(f"v_cvt_f32_u32 v{T+12+2*q}, v{IDX+q}")
                A(f"v_mov_b32 v{T+20}, 0x3e800000")
                A(f"v_fma_f32 v{T+13+2*q}, v{T+12+2*q}, s36, v{T+20}")
                A(f"v_mul_f32 v{T+12+2*q}, s36, v{T+12+2*q}")
                A(f"v_cos_f32 v{T+12+2*q}, v{T+12+2*q}")
                A(f"v_cos_f32 v{T+13+2*q}, v{T+13+2*q}")
                A(f"v_mul_f32 v{T+12+2*q}, s39, v{T+12+2*q}")
                A(f"v_mul_f32 v{T+13+2*q}, s39, v{T+13+2*q}")
                if ks < NKS-1:
                    A(f"v_add_u32 v{IDX+q}, v{IDX+q}, v{T+8}")
                    A(f"v_subrev_u32 v{T+9}, 576, v{IDX+q}")
                    A(f"v_min_u32 v{IDX+q}, v{IDX+q}, v{T+9}")
            if ks == 0:
                A(f"v_cmp_eq_u32 vcc, 0, v{T+2}")
                A(f"v_mul_f32 v{T+20}, 0.5, v{T+12}")
                A(f"v_cndmask_b32 v{T+12}, v{T+12}, v{T+20}, vcc")
                A(f"v_mov_b32 v{T+20}, 0")
                A(f"v_cndmask_b32 v{T+13}, v{T+13}, v{T+20}, vcc")
            if ks == 36:
                A(f"v_cmp_eq_u32 vcc, 0, v{T+2}")
                A(f"v_mul_f32 v{T+20}, 0.5, v{T+12}")
                A(f"v_mov_b32 v{T+21}, 0")
                A(f"v_cndmask_b32 v{T+12}, v{T+21}, v{T+20}, vcc")
                for z in range(13, 20): A(f"v_mov_b32 v{T+z}, 0")
            for p in range(4):
                A(f"v_cvt_pk_bf16_f32 v{CF+4*ks+p}, v{T+12+2*p}, v{T+13+2*p}")
    if kind == "fwd":
        A(f"v_mul_u32_u24 v{T+4}, {64*1152}, v{T+1}")
        A(f"v_lshl_add_u32 v{T+4}, v{T+2}, 4, v{T+4}")
        A(f"s_mul_i32 s27, s26, {8*1152}")
        step = 1152
        A(f"v_lshlrev_b32 v{T+5}, 12, v{T+3}")
        A(f"v_lshl_add_u32 v{T+5}, v{T+2}, 9, v{T+5}")
    else:
        A(f"v_mul_u32_u24 v{T+4}, 1280, v{T+1}")
        A(f"v_lshl_add_u32 v{T+4}, v{T+2}, 4, v{T+4}")
        A(f"s_mul_i32 s27, s26, {8*32*1280}")
        step = 32*1280
        A(f"v_mul_u32_u24 v{T+5}, 2304, v{T+1}")
        A(f"v_lshl_add_u32 v{T+5}, v{T+2}, 3, v{T+5}")
        A("s_lshl_b32 s3, s25, 6")
        A("s_add_u32 s3, s3, 1152")
        A(f"v_add_u32 v{T+5}, s3, v{T+5}")
    A("s_lshl_b32 s28, s26, 3")
    A("s_mov_b32 s29, 8")
    A.label(f"L{tag}_loop")
    def ld(ks):
        A(f"buffer_load_dwordx4 {v(DF+4*(ks%NPF),4)}, v{T+4}, s[8:11], s27 offen offset:{ks*32}")
    for ks in range(NPF): ld(ks)
    for ks in range(NKS):
        out = min(NKS, ks+NPF) - ks - 1
        A(f"s_waitcnt vmcnt({out})")
        c = "0" if ks == 0 else v(ACC,16)
        if kind == "fwd":
            A(f"{MFMA} {v(ACC,16)}, {v(DF+4*(ks%NPF),4)}, {v(CF+4*ks,4)}, {c}")
        else:
            A(f"{MFMA} {v(ACC,16)}, {v(CF+4*ks,4)}, {v(DF+4*(ks%NPF),4)}, {c}")
        if ks + NPF < NKS: ld(ks+NPF)
    for p in range(8):
        A(f"v_cvt_pk_bf16_f32 v{T+12+p}, v{ACC+2*p}, v{ACC+2*p+1}")
    if kind == "fwd":
        A("s_lshr_b32 s3, s28, 5"); A("s_lshl_b32 s3, s3, 11")
        A("s_and_b32 s4, s28, 31"); A("s_lshl_b32 s4, s4, 4")
        A("s_add_u32 s3, s3, s4")
        A(f"buffer_store_dwordx4 {v(T+12,4)}, v{T+5}, s[12:15], s3 offen")
        A(f"buffer_store_dwordx4 {v(T+16,4)}, v{T+5}, s[12:15], s3 offen offset:1024")
    else:
        A(f"s_mul_i32 s3, s28, {32*2304}")
        for b in range(4):
            A(f"buffer_store_dwordx2 {v(T+12+2*b,2)}, v{T+5}, s[12:15], s3 offen offset:{16*b}")
    A(f"s_add_u32 s27, s27, {step}")
    A("s_add_u32 s28, s28, 1")
    A("s_sub_u32 s29, s29, 1")
    A("s_cmp_lg_u32 s29, 0")
    A(f"s_cbranch_scc1 L{tag}_loop")
    A.label(exit_label)
    A("s_endpgm")

def kernel_s1(A): kernel_dft(A, "fwd", "s1")
def kernel_s3(A): kernel_dft(A, "inv", "s3")

def kernel_s2(A):
    C32, S32, N32 = 0, 8, 16
    C64, S64 = 24, 56
    D1 = 88
    D2 = 120
    ACC = 168
    T = 232
    exit_label = "Ls2_exit"
    A("s_load_dwordx4 s[40:43], s[0:1], 56")
    A("s_load_dwordx2 s[46:47], s[0:1], 88")
    A("v_lshrrev_b32 v1, 6, v0")
    A("v_readfirstlane_b32 s24, v1")
    A("s_cmp_ge_u32 s2, 74")
    A(f"s_cbranch_scc1 {exit_label}")
    A("s_waitcnt lgkmcnt(0)")
    A("s_lshl_b32 s25, s2, 2")
    A("s_add_u32 s25, s25, s24")
    srd(A, 8, 46, 576*4096, WS_X1)
    srd(A, 12, 46, 2048*1280, WS_Y)
    srd(A, 16, 40, 2048*289*2)
    srd(A, 20, 42, 2048*289*2)
    A(f"v_and_b32 v{T}, 63, v0")
    A(f"v_and_b32 v{T+1}, 31, v0")
    A(f"v_bfe_u32 v{T+2}, v0, 5, 1")
    A(f"v_lshl_add_u32 v{T+3}, v{T+2}, 8, v{T+1}")
    A(f"v_mul_u32_u24 v{T+3}, 1280, v{T+3}")
    A("s_lshl_b32 s3, s25, 2")
    A(f"v_add_u32 v{T+3}, s3, v{T+3}")
    A("s_cmp_lt_u32 s25, 289")
    A("s_cbranch_scc1 Ls2_go")
    A(f"v_mov_b32 v{T+4}, 0")
    for nt in range(2):
        for r in range(16):
            A(f"s_mov_b32 s3, {(((r&3)+8*(r>>2))*64 + 32*nt)*1280}")
            A(f"buffer_store_dword v{T+4}, v{T+3}, s[12:15], s3 offen")
    A("s_endpgm")
    A.label("Ls2_go")
    A(f"v_lshlrev_b32 v{T+4}, 4, v{T}")
    A("s_lshl_b32 s3, s25, 12")
    for k in range(4):
        A(f"buffer_load_dwordx4 {v(D1+4*k,4)}, v{T+4}, s[8:11], s3 offen offset:{k*1024}")
    for k in range(16): A(f"v_mov_b32 v{D1+16+k}, 0")
    A("s_cmp_eq_u32 s25, 0"); A("s_cbranch_scc1 Ls2_noim")
    A("s_cmp_eq_u32 s25, 288"); A("s_cbranch_scc1 Ls2_noim")
    A(f"s_add_u32 s3, s3, {288*4096}")
    for k in range(4):
        A(f"buffer_load_dwordx4 {v(D1+16+4*k,4)}, v{T+4}, s[8:11], s3 offen offset:{k*1024}")
    A.label("Ls2_noim")
    def gen(dstc, dsts, dstn, a_reg, tp, N):
        for jj in range(8):
            b0 = 16*tp + 8*(jj>>2) + (jj&3)
            A(f"v_lshl_add_u32 v{T+5}, v{T+2}, 2, {b0}")
            A(f"v_mul_u32_u24 v{T+5}, v{T+5}, v{a_reg}")
            A(f"v_and_b32 v{T+5}, {N-1}, v{T+5}")
            A(f"v_cvt_f32_u32 v{T+5}, v{T+5}")
            A(f"v_mul_f32 v{T+5}, {hex(f2u(1.0/N))}, v{T+5}")
            A(f"v_cos_f32 v{T+8+jj}, v{T+5}")
            A(f"v_sin_f32 v{T+16+jj}, v{T+5}")
        for p in range(4):
            A(f"v_cvt_pk_bf16_f32 v{dstc+p}, v{T+8+2*p}, v{T+9+2*p}")
            A(f"v_cvt_pk_bf16_f32 v{dsts+p}, v{T+16+2*p}, v{T+17+2*p}")
            if dstn is not None:
                A(f"v_xor_b32 v{dstn+p}, 0x80008000, v{dsts+p}")
    for tp in range(2): gen(C32+4*tp, S32+4*tp, N32+4*tp, T+1, tp, 32)
    A(f"v_add_u32 v{T+6}, 32, v{T+1}")
    for tl in range(2):
        for tp in range(4):
            gen(C64+16*tl+4*tp, S64+16*tl+4*tp, None, T+1 if tl == 0 else T+6, tp, 64)
    aR = lambda i: ACC + 16*i
    aI = lambda i: ACC + 32 + 16*i
    A("s_waitcnt vmcnt(0)")
    for mt in range(2):
        for t in range(2):
            c = "0" if t == 0 else v(aR(mt),16)
            A(f"{MFMA} {v(aR(mt),16)}, {v(D1+8*mt+4*t,4)}, {v(C32+4*t,4)}, {c}")
            c = "0" if t == 0 else v(aI(mt),16)
            A(f"{MFMA} {v(aI(mt),16)}, {v(D1+16+8*mt+4*t,4)}, {v(C32+4*t,4)}, {c}")
        for t in range(2):
            A(f"{MFMA} {v(aR(mt),16)}, {v(D1+16+8*mt+4*t,4)}, {v(S32+4*t,4)}, {v(aR(mt),16)}")
            A(f"{MFMA} {v(aI(mt),16)}, {v(D1+8*mt+4*t,4)}, {v(N32+4*t,4)}, {v(aI(mt),16)}")
    def twiddle(sign, lane_a, rowbase_fn):
        for i in range(2):
            for r in range(16):
                b0 = rowbase_fn(i, r)
                la = lane_a(i)
                A(f"v_lshl_add_u32 v{T+5}, v{T+2}, 2, {b0}")
                A(f"v_mul_u32_u24 v{T+5}, v{T+5}, v{la}")
                A(f"v_cvt_f32_u32 v{T+5}, v{T+5}")
                A(f"v_mul_f32 v{T+5}, {hex(f2u(1.0/2048))}, v{T+5}")
                A(f"v_cos_f32 v{T+7}, v{T+5}")
                A(f"v_sin_f32 v{T+8}, v{T+5}")
                xr, xi = aR(i)+r, aI(i)+r
                A(f"v_mul_f32 v{T+9}, v{xr}, v{T+7}")
                A(f"v_mul_f32 v{T+10}, v{xi}, v{T+7}")
                if sign < 0:
                    A(f"v_fma_f32 v{T+9}, v{xi}, v{T+8}, v{T+9}")
                    A(f"v_fma_f32 v{xi}, -v{xr}, v{T+8}, v{T+10}")
                else:
                    A(f"v_fma_f32 v{T+9}, -v{xi}, v{T+8}, v{T+9}")
                    A(f"v_fma_f32 v{xi}, v{xr}, v{T+8}, v{T+10}")
                A(f"v_mov_b32 v{xr}, v{T+9}")
    def pack(neg):
        for i in range(2):
            for p in range(8):
                A(f"v_cvt_pk_bf16_f32 v{D2+8*i+p}, v{aR(i)+2*p}, v{aR(i)+2*p+1}")
                A(f"v_cvt_pk_bf16_f32 v{D2+16+8*i+p}, v{aI(i)+2*p}, v{aI(i)+2*p+1}")
                src = D2+8*i+p if neg == "r" else D2+16+8*i+p
                A(f"v_xor_b32 v{D2+32+8*i+p}, 0x80008000, v{src}")
    twiddle(-1, lambda i: T+1, lambda i, r: 32*i + (r&3) + 8*(r>>2))
    pack("r")
    for m2 in range(2):
        for tp in range(4):
            c = "0" if tp == 0 else v(aR(m2),16)
            A(f"{MFMA} {v(aR(m2),16)}, {v(C64+16*m2+4*tp,4)}, {v(D2+4*tp,4)}, {c}")
            c = "0" if tp == 0 else v(aI(m2),16)
            A(f"{MFMA} {v(aI(m2),16)}, {v(C64+16*m2+4*tp,4)}, {v(D2+16+4*tp,4)}, {c}")
        for tp in range(4):
            A(f"{MFMA} {v(aR(m2),16)}, {v(S64+16*m2+4*tp,4)}, {v(D2+16+4*tp,4)}, {v(aR(m2),16)}")
            A(f"{MFMA} {v(aI(m2),16)}, {v(S64+16*m2+4*tp,4)}, {v(D2+32+4*tp,4)}, {v(aI(m2),16)}")
    A(f"v_mul_u32_u24 v{T+4}, 289, v{T+1}")
    A(f"v_add_u32 v{T+4}, s25, v{T+4}")
    A(f"v_lshlrev_b32 v{T+4}, 1, v{T+4}")
    A(f"v_mul_u32_u24 v{T+5}, {4*32*578}, v{T+2}")
    A(f"v_add_u32 v{T+4}, v{T+4}, v{T+5}")
    for mt in range(2):
        for r in range(16):
            A(f"s_mov_b32 s3, {(32*mt + (r&3) + 8*(r>>2))*32*578}")
            A(f"buffer_load_ushort v{D1+16*mt+r}, v{T+4}, s[16:19], s3 offen")
            A(f"buffer_load_ushort v{D2+16*mt+r}, v{T+4}, s[20:23], s3 offen")
    A("s_waitcnt vmcnt(0)")
    for i in range(2):
        for r in range(16):
            w = D1+16*i+r
            xr, xi = aR(i)+r, aI(i)+r
            A(f"v_lshlrev_b32 v{T+7}, 16, v{w}")
            A(f"v_lshlrev_b32 v{T+8}, 16, v{D2+16*i+r}")
            A(f"v_mul_f32 v{T+9}, v{xr}, v{T+7}")
            A(f"v_mul_f32 v{T+10}, v{xi}, v{T+7}")
            A(f"v_fma_f32 v{T+9}, -v{xi}, v{T+8}, v{T+9}")
            A(f"v_fma_f32 v{xi}, v{xr}, v{T+8}, v{T+10}")
            A(f"v_mov_b32 v{xr}, v{T+9}")
    pack("i")
    for nt in range(2):
        for tp in range(4):
            c = "0" if tp == 0 else v(aR(nt),16)
            A(f"{MFMA} {v(aR(nt),16)}, {v(D2+4*tp,4)}, {v(C64+16*nt+4*tp,4)}, {c}")
            c = "0" if tp == 0 else v(aI(nt),16)
            A(f"{MFMA} {v(aI(nt),16)}, {v(D2+16+4*tp,4)}, {v(C64+16*nt+4*tp,4)}, {c}")
        for tp in range(4):
            A(f"{MFMA} {v(aR(nt),16)}, {v(D2+32+4*tp,4)}, {v(S64+16*nt+4*tp,4)}, {v(aR(nt),16)}")
            A(f"{MFMA} {v(aI(nt),16)}, {v(D2+4*tp,4)}, {v(S64+16*nt+4*tp,4)}, {v(aI(nt),16)}")
    twiddle(+1, lambda i: T+1 if i == 0 else T+6, lambda i, r: (r&3) + 8*(r>>2))
    pack("i")
    for nt in range(2):
        for t in range(2):
            c = "0" if t == 0 else v(aR(nt),16)
            A(f"{MFMA} {v(aR(nt),16)}, {v(C32+4*t,4)}, {v(D2+8*nt+4*t,4)}, {c}")
            c = "0" if t == 0 else v(aI(nt),16)
            A(f"{MFMA} {v(aI(nt),16)}, {v(C32+4*t,4)}, {v(D2+16+8*nt+4*t,4)}, {c}")
        for t in range(2):
            A(f"{MFMA} {v(aR(nt),16)}, {v(N32+4*t,4)}, {v(D2+16+8*nt+4*t,4)}, {v(aR(nt),16)}")
            A(f"{MFMA} {v(aI(nt),16)}, {v(S32+4*t,4)}, {v(D2+8*nt+4*t,4)}, {v(aI(nt),16)}")
    for nt in range(2):
        for r in range(16):
            A(f"v_cvt_pk_bf16_f32 v{D1+16*nt+r}, v{aR(nt)+r}, v{aI(nt)+r}")
            A(f"s_mov_b32 s3, {(((r&3)+8*(r>>2))*64 + 32*nt)*1280}")
            A(f"buffer_store_dword v{D1+16*nt+r}, v{T+3}, s[12:15], s3 offen")
    A.label(exit_label)
    A("s_endpgm")
```

```python
from gen_common import *

def kernel_oproj(A, exit_label="Loproj_exit", nwg=192):
    ACC = 0
    FA = 48
    FB = 72
    VO = 104
    vB, vA0, vAc, vL16 = 110, 111, 112, 113
    T = 116
    A("s_load_dwordx2 s[40:41], s[0:1], 40")
    A("s_load_dwordx2 s[42:43], s[0:1], 72")
    A("s_load_dwordx2 s[46:47], s[0:1], 88")
    A("v_lshrrev_b32 v1, 6, v0")
    A("v_readfirstlane_b32 s24, v1")
    A(f"s_cmp_ge_u32 s2, {nwg}")
    A(f"s_cbranch_scc1 {exit_label}")
    A("s_waitcnt lgkmcnt(0)")
    A("s_and_b32 s25, s24, 1")
    A("s_lshr_b32 s26, s24, 1")
    A("s_and_b32 s3, s2, 7")
    A("s_lshr_b32 s4, s2, 3")
    A("s_and_b32 s5, s4, 3")
    A("s_lshl_b32 s27, s3, 2")
    A("s_add_u32 s27, s27, s5")
    A("s_lshr_b32 s28, s4, 2")
    A("s_mul_i32 s28, s28, 96")
    srd(A, 8, 40, 4096*1152)
    srd(A, 12, 46, 0x1000000, WS_C)
    srd(A, 16, 42, 2048*2304)
    A(f"v_and_b32 v{T}, 63, v0")
    A(f"v_lshlrev_b32 v{vL16}, 4, v{T}")
    A("s_lshl_b32 s3, s27, 1")
    A("s_add_u32 s3, s3, s25")
    A("s_lshl_b32 s3, s3, 18")
    A("s_lshl_b32 s4, s26, 16")
    A("s_add_u32 s29, s3, s4")
    A("s_mul_i32 s3, s25, 384")
    A("s_mov_b32 s4, 43691")
    A("s_lshl_b32 s5, s26, 10")
    A("s_lshl_b32 s6, s28, 1")
    A("s_movk_i32 s7, 1152")
    for i in range(6):
        A(f"v_add_u32 v{T+1}, s3, v{T}")
        A(f"v_add_u32 v{T+1}, {i*64}, v{T+1}")
        A(f"v_mul_lo_u32 v{T+2}, v{T+1}, s4")
        A(f"v_lshrrev_b32 v{T+2}, 19, v{T+2}")
        A(f"v_mul_u32_u24 v{T+3}, 12, v{T+2}")
        A(f"v_sub_u32 v{T+3}, v{T+1}, v{T+3}")
        A(f"v_add_u32 v{T+2}, s5, v{T+2}")
        A(f"v_mul_lo_u32 v{T+2}, v{T+2}, s7")
        A(f"v_lshl_add_u32 v{T+2}, v{T+3}, 4, v{T+2}")
        A(f"v_add_u32 v{VO+i}, s6, v{T+2}")
    A("s_mul_i32 s30, s26, 12288")
    A("s_mul_i32 s3, s25, 6144")
    A("s_add_u32 s30, s30, s3")
    A(f"v_bfe_u32 v{T+1}, v0, 2, 2")
    A(f"v_bfe_u32 v{T+2}, v0, 5, 1")
    A(f"v_lshl_add_u32 v{T+1}, v{T+2}, 2, v{T+1}")
    A(f"v_mul_u32_u24 v{T+1}, 192, v{T+1}")
    A(f"v_bfe_u32 v{T+2}, v0, 4, 1")
    A(f"v_lshl_add_u32 v{T+1}, v{T+2}, 5, v{T+1}")
    A(f"v_and_b32 v{T+2}, 3, v0")
    A(f"v_lshl_add_u32 v{T+1}, v{T+2}, 3, v{T+1}")
    A("s_mul_i32 s3, s26, 12288")
    A(f"v_add_u32 v{vA0}, s3, v{T+1}")
    for r in range(48): A(f"v_mov_b32 v{ACC+r}, 0")
    A("s_mov_b32 s31, 0"); A("s_mov_b32 s32, 0"); A("s_mov_b32 s33, 0")
    def dma():
        for i in range(6):
            A("s_add_u32 m0, s30, s32")
            if i: A(f"s_add_u32 m0, m0, {i*1024}")
            A(f"buffer_load_dwordx4 v{VO+i}, s[8:11], s31 offen lds")
        A(f"s_add_u32 s31, s31, {64*1152}")
        A("s_add_u32 s32, s32, 49152")
        A("s_cmp_eq_u32 s32, 147456")
        A("s_cselect_b32 s32, 0, s32")
    def ldB(st):
        for k in range(4):
            A(f"buffer_load_dwordx4 {v(FB+16*st+4*k,4)}, v{vL16}, s[12:15], s29 offen offset:{k*1024}")
        A("s_add_u32 s29, s29, 4096")
    ldB(0)
    dma(); dma()
    def body(it_parity, do_dma, do_ldb, last):
        st = it_parity
        A(f"s_waitcnt vmcnt({6 if not last else 0})")
        A("s_barrier")
        A(f"v_add_u32 v{vAc}, s33, v{vA0}")
        if do_ldb: ldB(st ^ 1)
        if do_dma: dma()
        def rd(fs, ks):
            for m in range(3):
                for e in range(2):
                    A(f"ds_read_b64_tr_b16 {v(FA+12*fs+4*m+2*e,2)}, v{vAc} offset:{(16*ks+8*e)*192+64*m}")
        rd(0, 0)
        for ks in range(4):
            fs = ks & 1
            if ks < 3:
                rd(fs ^ 1, ks+1); A("s_waitcnt lgkmcnt(6)")
            else:
                A("s_waitcnt lgkmcnt(0)")
            for m in range(3):
                A(f"{MFMA} {v(ACC+16*m,16)}, {v(FA+12*fs+4*m,4)}, {v(FB+16*st+4*ks,4)}, {v(ACC+16*m,16)}")
        A("s_add_u32 s33, s33, 49152")
        A("s_cmp_eq_u32 s33, 147456")
        A("s_cselect_b32 s33, 0, s33")
    A("s_mov_b32 s34, 7")
    A.label("Loproj_loop")
    body(0, True, True, False)
    body(1, True, True, False)
    A("s_sub_u32 s34, s34, 1")
    A("s_cmp_lg_u32 s34, 0")
    A("s_cbranch_scc1 Loproj_loop")
    body(0, False, True, False)
    body(1, False, False, True)
    A("s_barrier")
    A("s_mul_i32 s3, s24, 12288")
    A(f"v_add_u32 v{T+1}, s3, v{vL16}")
    for k in range(12):
        A(f"ds_write_b128 v{T+1}, {v(ACC+4*k,4)} offset:{k*1024}")
    A("s_waitcnt lgkmcnt(0)")
    A("s_barrier")
    A("s_cmp_ge_u32 s24, 6")
    A(f"s_cbranch_scc1 {exit_label}")
    A("s_mul_i32 s3, s25, 12288")
    A("s_lshl_b32 s4, s26, 12")
    A("s_add_u32 s3, s3, s4")
    A(f"v_add_u32 v{T+1}, s3, v{vL16}")
    A(f"v_add_u32 v{T+4}, 49152, v{T+1}")
    for kq in range(4):
        for k in range(4):
            A(f"ds_read_b128 {v(16*kq+4*k,4)}, v{T+1+3*(kq>>1)} offset:{(kq&1)*24576+k*1024}")
    A("s_waitcnt lgkmcnt(0)")
    for r in range(16):
        A(f"v_add_f32 v{r}, v{r}, v{16+r}")
        A(f"v_add_f32 v{32+r}, v{32+r}, v{48+r}")
    for r in range(16):
        A(f"v_add_f32 v{r}, v{r}, v{32+r}")
    for j in range(8):
        A(f"v_cvt_pk_bf16_f32 v{64+j}, v{2*j}, v{2*j+1}")
    A("s_lshl_b32 s3, s27, 1")
    A("s_add_u32 s3, s3, s25")
    A("s_lshl_b32 s3, s3, 5")
    A(f"v_and_b32 v{T+2}, 31, v{T}")
    A(f"v_add_u32 v{T+2}, s3, v{T+2}")
    A("s_movk_i32 s4, 2304")
    A(f"v_mul_lo_u32 v{T+2}, v{T+2}, s4")
    A(f"v_bfe_u32 v{T+3}, v{T}, 5, 1")
    A(f"v_lshl_add_u32 v{T+2}, v{T+3}, 3, v{T+2}")
    A("s_lshl_b32 s4, s26, 5")
    A("s_add_u32 s4, s4, s28")
    A("s_lshl_b32 s4, s4, 1")
    for b in range(4):
        A(f"buffer_store_dwordx2 {v(64+2*b,2)}, v{T+2}, s[16:19], s4 offen offset:{16*b}")
    A.label(exit_label)
    A("s_endpgm")
```

```python
from gen_common import *
def gemm_variant(A, tag, BN, nk, ld_act, swap, outkind):
    WM = 4 if BN == 256 else 2
    WN = 2
    RB = BN * 2
    ACC = 0
    nacc = WM * WN * 16
    FR = nacc
    fsz = WM*4 + WN*4
    AD = FR + 2*fsz
    VO = AD + 6
    T = VO + 8
    def acc(a, b): return ACC + (a*WN + b)*16
    def fa(st, a): return FR + st*fsz + a*4
    def fw(st, b): return FR + st*fsz + WM*4 + b*4

    A(f"v_and_b32 v{T}, 63, v0")
    A(f"v_and_b32 v{T+1}, 31, v0")
    A(f"v_bfe_u32 v{T+2}, v0, 5, 1")
    if BN == 256:
        A("s_and_b32 s23, s22, 1"); A("s_lshr_b32 s24, s22, 1")
    else:
        A("s_and_b32 s23, s22, 3"); A("s_lshr_b32 s24, s22, 2")
    A(f"s_mul_i32 s25, s23, {WM*32*128}")
    A(f"v_lshlrev_b32 v{T+3}, 7, v{T+1}")
    A(f"v_add_u32 v{T+3}, s25, v{T+3}")
    A(f"v_bfe_u32 v{T+4}, v0, 1, 3")
    for ks in range(4):
        A(f"v_or_b32 v{T+5}, {2*ks}, v{T+2}")
        A(f"v_xor_b32 v{T+5}, v{T+5}, v{T+4}")
        A(f"v_lshl_add_u32 v{AD+ks}, v{T+5}, 4, v{T+3}")
    A(f"v_bfe_u32 v{T+5}, v0, 2, 2")
    A(f"v_and_b32 v{T+6}, 3, v0")
    A(f"v_bfe_u32 v{T+7}, v0, 4, 1")
    A(f"v_lshl_add_u32 v{T+8}, v{T+2}, 3, v{T+5}")
    A(f"v_mul_u32_u24 v{T+8}, {RB}, v{T+8}")
    A(f"v_add_u32 v{T+8}, 32768, v{T+8}")
    A(f"v_and_b32 v{T+9}, 1, v{T+6}")
    A(f"v_lshl_add_u32 v{T+8}, v{T+9}, 3, v{T+8}")
    A(f"v_lshrrev_b32 v{T+9}, 1, v{T+6}")
    A(f"v_lshl_add_u32 v{T+9}, v{T+7}, 1, v{T+9}")
    for b in range(WN):
        A(f"s_lshl_b32 s25, s24, 1")
        A(f"s_add_u32 s25, s25, {b}")
        A(f"s_lshl_b32 s25, s25, 2")
        A(f"v_add_u32 v{T+10}, s25, v{T+9}")
        A(f"v_lshlrev_b32 v{T+11}, 2, v{T+5}")
        A(f"v_xor_b32 v{T+10}, v{T+10}, v{T+11}")
        A(f"v_lshl_add_u32 v{AD+4+b}, v{T+10}, 4, v{T+8}")
    A(f"v_lshrrev_b32 v{T+5}, 3, v{T}")
    A(f"v_and_b32 v{T+6}, 7, v{T}")
    A(f"s_lshl_b32 s25, s22, 5")
    A(f"s_add_u32 s25, s25, s20")
    A(f"s_mov_b32 s26, {ld_act}")
    for i in range(4):
        A(f"v_add_u32 v{T+7}, {i*8}, v{T+5}")
        A(f"v_bfe_u32 v{T+8}, v{T+7}, 1, 3")
        A(f"v_xor_b32 v{T+8}, v{T+8}, v{T+6}")
        A(f"v_add_u32 v{T+7}, s25, v{T+7}")
        A(f"v_mul_lo_u32 v{T+7}, v{T+7}, s26")
        A(f"v_lshl_add_u32 v{VO+i}, v{T+8}, 4, v{T+7}")
    A(f"s_lshl_b32 s25, s21, 1")
    if BN == 256:
        nwi = 4
        A(f"v_lshrrev_b32 v{T+5}, 5, v{T}")
        A(f"v_and_b32 v{T+6}, 31, v{T}")
        for i in range(4):
            A(f"v_add_u32 v{T+7}, {2*i}, v{T+5}")
            A(f"v_and_b32 v{T+8}, 3, v{T+7}")
            A(f"v_lshlrev_b32 v{T+8}, 2, v{T+8}")
            A(f"v_xor_b32 v{T+8}, v{T+8}, v{T+6}")
            A(f"s_lshl_b32 s26, s22, 3")
            A(f"v_add_u32 v{T+7}, s26, v{T+7}")
            A(f"v_lshlrev_b32 v{T+7}, 13, v{T+7}")
            A(f"v_lshl_add_u32 v{T+7}, v{T+8}, 4, v{T+7}")
            A(f"v_add_u32 v{VO+4+i}, s25, v{T+7}")
    else:
        nwi = 2
        A(f"v_lshrrev_b32 v{T+5}, 4, v{T}")
        A(f"v_and_b32 v{T+6}, 15, v{T}")
        A(f"v_lshlrev_b32 v{T+8}, 2, v{T+5}")
        A(f"v_xor_b32 v{T+8}, v{T+8}, v{T+6}")
        for i in range(2):
            A(f"v_add_u32 v{T+7}, {4*i}, v{T+5}")
            A(f"s_lshl_b32 s26, s22, 3")
            A(f"v_add_u32 v{T+7}, s26, v{T+7}")
            A(f"v_lshlrev_b32 v{T+7}, 13, v{T+7}")
            A(f"v_lshl_add_u32 v{T+7}, v{T+8}, 4, v{T+7}")
            A(f"v_add_u32 v{VO+4+i}, s25, v{T+7}")
    A("s_lshl_b32 s28, s22, 12")
    A(f"s_mul_i32 s29, s22, {8*RB}")
    A("s_add_u32 s29, s29, 32768")
    A("s_mov_b32 s30, 0")
    A("s_mov_b32 s31, 0")
    for r in range(nacc):
        A(f"v_mov_b32 v{ACC+r}, 0")

    def dma(k):
        out = []
        if k < 4:
            out.append(f"s_add_u32 m0, s28, {k*1024}")
            out.append(f"buffer_load_dwordx4 v{VO+k}, s[8:11], s30 offen lds")
        else:
            i = k - 4
            out.append(f"s_add_u32 m0, s29, {i*1024}")
            out.append(f"buffer_load_dwordx4 v{VO+4+i}, s[12:15], s31 offen lds")
        return out
    ndma = 4 + nwi
    def reads(st, ks):
        out = []
        for a in range(WM):
            out.append(f"ds_read_b128 {v(fa(st,a),4)}, v{AD+ks} offset:{a*4096}")
        for b in range(WN):
            for e in range(2):
                out.append(f"ds_read_b64_tr_b16 {v(fw(st,b)+2*e,2)}, v{AD+4+b} offset:{(16*ks+4*e)*RB}")
        return out
    nrd = WM + 2*WN
    def mfmas(st):
        out = []
        for a in range(WM):
            for b in range(WN):
                if swap:
                    out.append(f"{MFMA} {v(acc(a,b),16)}, {v(fa(st,a),4)}, {v(fw(st,b),4)}, {v(acc(a,b),16)}")
                else:
                    out.append(f"{MFMA} {v(acc(a,b),16)}, {v(fw(st,b),4)}, {v(fa(st,a),4)}, {v(acc(a,b),16)}")
        return out

    for k in range(ndma):
        for l in dma(k): A(l)
    A("s_add_u32 s30, s30, 128"); A("s_add_u32 s31, s31, 0x80000")
    A("s_xor_b32 s28, s28, 0x10000"); A("s_xor_b32 s29, s29, 0x10000")

    def body(with_dma):
        A("s_waitcnt vmcnt(0)")
        A("s_barrier")
        for l in reads(0, 0): A(l)
        dlist = [dma(k) for k in range(ndma)] if with_dma else []
        for ks in range(4):
            st = ks & 1
            if ks < 3:
                for l in reads(st ^ 1, ks+1): A(l)
                A(f"s_waitcnt lgkmcnt({nrd})")
            else:
                A("s_waitcnt lgkmcnt(0)")
            ms = mfmas(st)
            for mi, m in enumerate(ms):
                A(m)
                if dlist and mi % 2 == 1:
                    for l in dlist.pop(0): A(l)
        while dlist:
            for l in dlist.pop(0): A(l)
        if with_dma:
            A("s_add_u32 s30, s30, 128"); A("s_add_u32 s31, s31, 0x80000")
            A("s_xor_b32 s28, s28, 0x10000"); A("s_xor_b32 s29, s29, 0x10000")
        for k in range(6):
            A(f"v_xor_b32 v{AD+k}, 0x10000, v{AD+k}")

    A(f"s_mov_b32 s27, {nk-1}")
    A.label(f"L{tag}_loop")
    body(True)
    A("s_sub_u32 s27, s27, 1")
    A("s_cmp_lg_u32 s27, 0")
    A(f"s_cbranch_scc1 L{tag}_loop")
    body(False)

    A(f"v_lshlrev_b32 v{T}, 4, v{T}")
    PK = FR
    for a in range(WM):
        for b in range(WN):
            A(f"s_mul_i32 s25, s23, {WM}")
            A(f"s_add_u32 s25, s25, {a}")
            A(f"s_lshr_b32 s26, s20, 5")
            A(f"s_add_u32 s25, s25, s26")
            A(f"s_lshl_b32 s26, s24, 1")
            A(f"s_add_u32 s26, s26, {b}")
            A(f"s_lshr_b32 s27, s21, 5")
            A(f"s_add_u32 s26, s26, s27")
            A(f"s_lshr_b32 s27, s26, 2")
            A(f"s_lshl_b32 s27, s27, 6")
            A(f"s_add_u32 s27, s27, s25")
            A(f"s_lshl_b32 s27, s27, 13")
            A(f"s_and_b32 s26, s26, 3")
            A(f"s_lshl_b32 s26, s26, 11")
            A(f"s_add_u32 s27, s27, s26")
            for t in range(2):
                base = PK + ((a*WN+b)*2 + t) % 4 * 4
                for j in range(4):
                    A(f"v_cvt_pk_bf16_f32 v{base+j}, v{acc(a,b)+8*t+2*j}, v{acc(a,b)+8*t+2*j+1}")
                A(f"buffer_store_dwordx4 {v(base,4)}, v{T}, s[16:19], s27 offen offset:{t*1024}")
    A("s_endpgm")

def kernel_proj(A):
    A("s_load_dwordx4 s[36:39], s[0:1], 0")
    A("s_load_dwordx4 s[40:43], s[0:1], 16")
    A("s_load_dwordx2 s[44:45], s[0:1], 32")
    A("s_load_dwordx2 s[46:47], s[0:1], 88")
    A("v_lshrrev_b32 v1, 6, v0")
    A("v_readfirstlane_b32 s22, v1")
    A("s_cmp_ge_u32 s2, 512")
    A("s_cbranch_scc1 Lproj_exit")
    A("s_waitcnt lgkmcnt(0)")
    A("s_and_b32 s3, s2, 255")
    A("s_and_b32 s4, s3, 7")
    A("s_lshr_b32 s5, s3, 3")
    A("s_and_b32 s6, s5, 7")
    A("s_lshr_b32 s5, s5, 3")
    A("s_lshl_b32 s4, s4, 2")
    A("s_add_u32 s7, s4, s5")
    A("s_lshl_b32 s20, s6, 8")
    A("s_cmp_ge_u32 s2, 256")
    A("s_cbranch_scc1 Lproj_q")
    srd(A, 8, 38, 2048*1024)
    A("s_cmp_ge_u32 s7, 16")
    A("s_cbranch_scc1 Lproj_v")
    srd(A, 12, 42, 512*8192)
    srd(A, 16, 46, 0x1000000, WS_K)
    A("s_lshl_b32 s21, s7, 8")
    gemm_variant(A, "k", 256, 8, 1024, False, "K")
    A.label("Lproj_v")
    srd(A, 12, 44, 512*8192)
    srd(A, 16, 46, 0x1000000, WS_V)
    A("s_sub_u32 s7, s7, 16")
    A("s_lshl_b32 s21, s7, 8")
    gemm_variant(A, "v", 256, 8, 1024, True, "V")
    A.label("Lproj_q")
    srd(A, 8, 36, 2048*1152)
    srd(A, 12, 40, 576*8192)
    srd(A, 16, 46, 0x1000000, WS_Q)
    A("s_lshl_b32 s21, s7, 7")
    gemm_variant(A, "q", 128, 9, 1152, False, "Q")
    A.label("Lproj_exit")
    A("s_endpgm")
```

```python
import sys
from gen_common import *
from gen_proj import kernel_proj
from gen_attn import kernel_attn
from gen_oproj import kernel_oproj
from gen_fft import kernel_s1, kernel_s2, kernel_s3
kernels = [("proj_kernel", kernel_proj, 512, 512, 131072, 256),
           ("attn_kernel", kernel_attn, 256, 512, 135168, 256),
           ("oproj_kernel", kernel_oproj, 192, 512, 147456, 128),
           ("s1_kernel", kernel_s1, 36, 256, 0, 256),
           ("s2_kernel", kernel_s2, 74, 256, 0, 256),
           ("s3_kernel", kernel_s3, 36, 256, 0, 256)]
emit_file(kernels, sys.argv[1] if len(sys.argv) > 1 else "cdna_kernels/%s.s" % NAME)
```

```python
from gen_common import *
import os
EXP = os.environ.get('EXP', '')

def kernel_attn(A):
    QF, O = 0, 32
    S = [96, 112]; P = [128, 136]; FR = 144; NFR = 8
    vM, vL, vL2, vMC = 176, 177, 178, 179
    vAl = [180, 181]
    vK = [182, 183]; vV = [184, 185]
    vD, vOff, vLane16, vNeg = 186, 187, 188, 189
    T = 192
    sF = [50, 51]
    A("s_load_dwordx2 s[46:47], s[0:1], 88")
    A("v_lshrrev_b32 v1, 6, v0")
    A("v_readfirstlane_b32 s24, v1")
    A("s_cmp_ge_u32 s2, 256")
    A("s_cbranch_scc1 Lattn_exit")
    A("s_waitcnt lgkmcnt(0)")
    A("s_lshr_b32 s25, s24, 2")
    A("s_and_b32 s26, s24, 3")
    A("s_and_b32 s3, s2, 7")
    A("s_lshr_b32 s4, s2, 3")
    A("s_and_b32 s5, s4, 3")
    A("s_lshl_b32 s27, s3, 2")
    A("s_add_u32 s27, s27, s5")
    A("s_lshr_b32 s28, s2, 5")
    A("s_lshl_b32 s3, s27, 19")
    for d, off in ((8, WS_K), (12, WS_V), (16, WS_Q)):
        A(f"s_add_u32 s{d}, s46, {off}")
        A(f"s_addc_u32 s{d+1}, s47, 0")
        A(f"s_add_u32 s{d}, s{d}, s3")
        A(f"s_addc_u32 s{d+1}, s{d+1}, 0")
        A(f"s_mov_b32 s{d+2}, 0x80000")
        A(f"s_mov_b32 s{d+3}, 0x00020000")
    srd(A, 20, 46, 0x1000000, WS_C)
    A("s_mov_b32 s44, 0x3e0293ee")
    A("s_mov_b32 s45, 0x4278f5c3")
    A(f"v_and_b32 v{T}, 63, v0")
    A(f"v_lshlrev_b32 v{vLane16}, 4, v{T}")
    A("s_lshl_b32 s3, s25, 14")
    A(f"v_add_u32 v{vK[0]}, s3, v{vLane16}")
    A(f"v_add_u32 v{vK[1]}, 0x8000, v{vK[0]}")
    A(f"v_add_u32 v{vV[0]}, 0x10000, v{vK[0]}")
    A(f"v_add_u32 v{vV[1]}, 0x18000, v{vK[0]}")
    A("s_lshl_b32 s3, s24, 12")
    A(f"v_add_u32 v{vOff}, s3, v{vLane16}")
    A(f"v_and_b32 v{T+1}, 31, v0")
    A(f"v_bfe_u32 v{T+2}, v0, 5, 1")
    A(f"v_lshlrev_b32 v{T+2}, 2, v{T+2}")
    A(f"v_sub_u32 v{vD}, v{T+1}, v{T+2}")
    A("s_lshl_b32 s3, s25, 1")
    A("s_sub_u32 s3, s3, s26")
    A("s_lshl_b32 s3, s3, 5")
    A(f"v_subrev_u32 v{vD}, s3, v{vD}")
    A(f"v_mov_b32 v{vNeg}, 0xf149f2ca")
    A("s_sub_u32 s29, 15, s28")
    A("s_sub_u32 s35, 16, s28")
    A("s_mov_b32 s30, 0"); A("s_mov_b32 s34, 0")
    A("s_lshl_b32 s32, s24, 12")
    A("s_mov_b32 s36, 0"); A("s_mov_b32 s37, 0")
    uid = [0]
    def dma(which):
        sr, srdb, base = (36, 8, 0) if which == "K" else (37, 12, 0x10000)
        uid[0] += 1; lab = f"Lattn_dsk{uid[0]}"
        A(f"s_cmp_ge_u32 s{sr}, 17")
        A(f"s_cbranch_scc1 {lab}")
        A(f"s_sub_u32 s3, s{sr}, s35")
        A(f"s_cmp_ge_u32 s{sr}, s35")
        A(f"s_cselect_b32 s3, s3, s{sr}")
        A("s_lshl_b32 s33, s3, 15")
        A(f"s_and_b32 s4, s{sr}, 1")
        A("s_lshl_b32 s4, s4, 15")
        A("s_add_u32 s4, s4, s32")
        A(f"s_add_u32 m0, s4, {base}")
        for i in range(4):
            A(f"buffer_load_dwordx4 v{vOff}, s[{srdb}:{srdb+3}], s33 offen offset:{i*1024} lds")
        A.label(lab)
        A(f"s_add_u32 s{sr}, s{sr}, 1")
    def init_tile():
        A("s_lshl_b32 s3, s29, 2")
        A("s_add_u32 s3, s3, s26")
        A("s_lshl_b32 s3, s3, 13")
        A(f"v_add_u32 v{T+3}, 4096, v{vLane16}")
        for ks in range(8):
            A(f"buffer_load_dwordx4 {v(QF+4*ks,4)}, v{vLane16 if ks < 4 else T+3}, s[16:19], s3 offen offset:{(ks%4)*1024}")
        for r in range(64): A(f"v_mov_b32 v{O+r}, 0")
        A(f"v_mov_b32 v{vM}, 0xf149f2ca")
        A(f"v_mov_b32 v{vL}, 0"); A(f"v_mov_b32 v{vL2}, 0")
    dma("K"); dma("V"); dma("K")
    init_tile()
    if 'stamp' in EXP:
        for i in range(64, 72): A(f"s_mov_b32 s{i}, 0")

    frc = [0]
    def phase(mf, va, pre_va=6):
        PRE = 4
        n = len(mf)
        regs = []
        def rd(k):
            r = FR + 4*(frc[0] % NFR); frc[0] += 1; regs.append(r)
            A(f"ds_read_b128 {v(r,4)}, v{mf[k][0]} offset:{mf[k][1]}")
        if n == 0:
            for l in va: A(l)
            return
        for k in range(min(PRE, n)): rd(k)
        j = 0
        while j < min(pre_va, len(va)): A(va[j]); j += 1
        rest = len(va) - j; j0 = j
        for k in range(n):
            out = min(n, k+PRE) - k - 1
            A(f"s_waitcnt lgkmcnt({out})")
            A(mf[k][2].format(fr=v(regs[k],4)))
            if k + PRE < n: rd(k+PRE)
            tgt = j0 + (rest * (k+1)) // n
            while j < tgt: A(va[j]); j += 1
    def qk(x, kreg, b):
        return [(kreg, b*8192 + ks*1024, f"{MFMA} {v(S[x],16)}, {{fr}}, {v(QF+4*ks,4)}, " + ("0" if ks == 0 else v(S[x],16))) for ks in range(8)]
    def pv(x, vreg, b):
        return [(vreg, b*8192 + (2*dt+t)*1024, f"{MFMA} {v(O+16*dt,16)}, {{fr}}, {v(P[x]+4*t,4)}, {v(O+16*dt,16)}") for t in range(2) for dt in range(4)]
    def smA(x, masked, b):
        L = []; Sx = S[x]
        if masked:
            for r in range(16):
                off = (r&3) + 8*(r>>2) + 32*b
                L.append(f"v_cmp_gt_i32 vcc, {off}, v{vD}")
                L.append(f"v_cndmask_b32 v{Sx+r}, v{Sx+r}, v{vNeg}, vcc")
        L.append(f"v_max3_f32 v{T}, v{Sx}, v{Sx+1}, v{Sx+2}")
        L.append(f"v_max3_f32 v{T+1}, v{Sx+3}, v{Sx+4}, v{Sx+5}")
        L.append(f"v_max3_f32 v{T}, v{T}, v{Sx+6}, v{Sx+7}")
        L.append(f"v_max3_f32 v{T+1}, v{T+1}, v{Sx+8}, v{Sx+9}")
        L.append(f"v_max3_f32 v{T}, v{T}, v{Sx+10}, v{Sx+11}")
        L.append(f"v_max3_f32 v{T+1}, v{T+1}, v{Sx+12}, v{Sx+13}")
        L.append(f"v_max3_f32 v{T}, v{T}, v{Sx+14}, v{Sx+15}")
        L.append(f"v_max_f32 v{T}, v{T}, v{T+1}")
        L.append(f"v_mov_b32 v{T+1}, v{T}")
        L.append(f"v_permlane32_swap_b32 v{T}, v{T+1}")
        L.append(f"v_max_f32 v{T}, v{T}, v{T+1}")
        L.append(f"v_add_f32 v{T+1}, s45, v{vM}")
        L.append(f"v_cmp_gt_f32 vcc, v{T}, v{T+1}")
        L.append(f"v_max_f32 v{T}, v{T}, v{vM}")
        L.append(f"s_cmp_lg_u64 vcc, 0")
        L.append(f"s_cselect_b32 s{sF[x]}, 1, 0")
        L.append(f"s_cselect_b64 s[52:53], -1, 0")
        L.append(f"v_cndmask_b32 v{T}, v{vM}, v{T}, s[52:53]")
        L.append(f"v_sub_f32 v{T+1}, v{vM}, v{T}")
        L.append(f"v_mul_f32 v{T+1}, s44, v{T+1}")
        L.append(f"v_exp_f32 v{vAl[x]}, v{T+1}")
        L.append(f"v_mov_b32 v{vM}, v{T}")
        L.append(f"v_mul_f32 v{vMC}, s44, v{T}")
        L.append(f"v_mul_f32 v{vL}, v{vL}, v{vAl[x]}")
        L.append(f"v_mul_f32 v{vL2}, v{vL2}, v{vAl[x]}")
        for r in range(16): L.append(f"v_fma_f32 v{Sx+r}, v{Sx+r}, s44, -v{vMC}")
        return L
    def smB(x):
        L = []; Sx = S[x]
        for r in range(16): L.append(f"v_exp_f32 v{Sx+r}, v{Sx+r}")
        for r in range(16):
            L.append(f"v_add_f32 v{vL if r&1 else vL2}, v{vL if r&1 else vL2}, v{Sx+r}")
            if r & 1: L.append(f"v_cvt_pk_bf16_f32 v{P[x]+(r>>1)}, v{Sx+r-1}, v{Sx+r}")
        return L
    def rescale(x):
        uid[0] += 1; lab = f"Lattn_rs{uid[0]}"
        A(f"s_cmp_eq_u32 s{sF[x]}, 0")
        A(f"s_cbranch_scc1 {lab}")
        for r in range(64): A(f"v_mul_f32 v{O+r}, v{O+r}, v{vAl[x]}")
        A.label(lab)
    def tstamp(acc):
        if 'stamp' not in EXP: return
        A("s_memtime s[60:61]")
        A("s_waitcnt lgkmcnt(0)")
        if acc is not None:
            A("s_sub_u32 s62, s60, s63")
            A(f"s_add_u32 s{acc}, s{acc}, s62")
        A("s_mov_b32 s63, s60")
    def stage(first, last):
        tstamp(70 if not first else None)
        phase(qk(1, vK[0], 1), smA(0, last, 0))
        tstamp(64)
        if not first:
            rescale(1)
            phase(pv(1, vV[1], 1), smB(0))
        else:
            phase([], smB(0))
        tstamp(65)
        A("s_waitcnt vmcnt(0)")
        tstamp(66)
        A("s_barrier")
        tstamp(67)
        if not last: dma("K")
        dma("V")
        if not last: phase(qk(0, vK[1], 0), smA(1, False, 1))
        else: phase([], smA(1, True, 1))
        tstamp(68)
        rescale(0)
        phase(pv(0, vV[0], 0), smB(1))
        tstamp(69)
    def swap_par():
        for r in vK + vV: A(f"v_xor_b32 v{r}, 0x8000, v{r}")

    A.label("Lattn_tile")
    A("s_waitcnt vmcnt(0)")
    A("s_barrier")
    phase(qk(0, vK[0], 0), [])
    A("s_cmp_eq_u32 s29, 0")
    A("s_cbranch_scc1 Lattn_only")
    stage(True, False)
    swap_par()
    A("s_mov_b32 s30, 1")
    A.label("Lattn_loop")
    A("s_cmp_ge_u32 s30, s29")
    A("s_cbranch_scc1 Lattn_last")
    stage(False, False)
    swap_par()
    A("s_add_u32 s30, s30, 1")
    A("s_branch Lattn_loop")
    A.label("Lattn_last")
    stage(False, True)
    A("s_branch Lattn_fin")
    A.label("Lattn_only")
    stage(True, True)
    A.label("Lattn_fin")
    rescale(1)
    phase(pv(1, vV[0], 1), [])
    A(f"v_add_f32 v{vL}, v{vL}, v{vL2}")
    A(f"v_mov_b32 v{T}, v{vL}")
    A(f"v_mov_b32 v{T+1}, v{vL}")
    A(f"v_permlane32_swap_b32 v{T}, v{T+1}")
    A(f"v_add_f32 v{vL}, v{T}, v{T+1}")
    A("s_barrier")
    A(f"v_lshrrev_b32 v{T+2}, 1, v{vLane16}")
    A("s_lshl_b32 s3, s24, 9")
    A("s_add_u32 s3, s3, 131072")
    A(f"v_add_u32 v{T+2}, s3, v{T+2}")
    A(f"v_mov_b32 v{T+6}, v{vM}")
    A(f"v_mov_b32 v{T+7}, v{vL}")
    A(f"ds_write_b64 v{T+2}, {v(T+6,2)}")
    A("s_lshl_b32 s3, s25, 14")
    A(f"v_subrev_u32 v{T+3}, s3, v{vK[0]}")
    A("s_lshl_b32 s3, s26, 13")
    A(f"v_add_u32 v{T+3}, s3, v{T+3}")
    A(f"v_add_u32 v{T+4}, 0x10000, v{T+3}")
    A("s_cmp_eq_u32 s25, 0")
    A("s_cbranch_scc0 Lattn_w1")
    for k in range(8): A(f"ds_write_b128 v{T+3}, {v(O+32+4*k,4)} offset:{k*1024}")
    A("s_branch Lattn_w2")
    A.label("Lattn_w1")
    for k in range(8): A(f"ds_write_b128 v{T+4}, {v(O+4*k,4)} offset:{k*1024}")
    A.label("Lattn_w2")
    A("s_waitcnt lgkmcnt(0)")
    A("s_barrier")
    A(f"v_xor_b32 v{T+2}, 2048, v{T+2}")
    A(f"ds_read_b64 {v(T+6,2)}, v{T+2}")
    A("s_cmp_eq_u32 s25, 0")
    A("s_cbranch_scc0 Lattn_r1")
    for k in range(8): A(f"ds_read_b128 {v(96+4*k,4)}, v{T+4} offset:{k*1024}")
    A("s_branch Lattn_r2")
    A.label("Lattn_r1")
    for k in range(8): A(f"ds_read_b128 {v(96+4*k,4)}, v{T+3} offset:{k*1024}")
    A.label("Lattn_r2")
    A("s_waitcnt lgkmcnt(0)")
    A(f"v_max_f32 v{T}, v{vM}, v{T+6}")
    A(f"v_sub_f32 v{T+1}, v{vM}, v{T}")
    A(f"v_sub_f32 v{T+5}, v{T+6}, v{T}")
    A(f"v_mul_f32 v{T+1}, s44, v{T+1}")
    A(f"v_mul_f32 v{T+5}, s44, v{T+5}")
    A(f"v_exp_f32 v{T+1}, v{T+1}")
    A(f"v_exp_f32 v{T+5}, v{T+5}")
    A(f"v_mul_f32 v{T+8}, v{vL}, v{T+1}")
    A(f"v_fma_f32 v{T+8}, v{T+7}, v{T+5}, v{T+8}")
    A(f"v_rcp_f32 v{T+8}, v{T+8}")
    A(f"v_mul_f32 v{T+1}, v{T+1}, v{T+8}")
    A(f"v_mul_f32 v{T+5}, v{T+5}, v{T+8}")
    A("s_lshl_b32 s3, s29, 2")
    A("s_add_u32 s3, s3, s26")
    A("s_lshl_b32 s3, s3, 5")
    A("s_add_u32 s3, s3, s27")
    A("s_lshl_b32 s3, s3, 13")
    A("s_lshl_b32 s4, s25, 12")
    A("s_add_u32 s3, s3, s4")
    def fin(ob):
        for k in range(4):
            for j in range(8):
                A(f"v_mul_f32 v{96+8*k+j}, v{96+8*k+j}, v{T+5}")
                A(f"v_fma_f32 v{96+8*k+j}, v{ob+8*k+j}, v{T+1}, v{96+8*k+j}")
            for j in range(4):
                A(f"v_cvt_pk_bf16_f32 v{128+4*k+j}, v{96+8*k+2*j}, v{96+8*k+2*j+1}")
            A(f"buffer_store_dwordx4 {v(128+4*k,4)}, v{vLane16}, s[20:23], s3 offen offset:{k*1024}")
    A("s_cmp_eq_u32 s25, 0")
    A("s_cbranch_scc0 Lattn_f1")
    fin(O)
    A("s_branch Lattn_f2")
    A.label("Lattn_f1")
    fin(O+32)
    A.label("Lattn_f2")
    A("s_cmp_eq_u32 s34, 1")
    A("s_cbranch_scc1 Lattn_exit")
    A("s_mov_b32 s34, 1")
    A("s_mov_b32 s29, s28")
    swap_par()
    A("s_barrier")
    dma("K")
    init_tile()
    A("s_branch Lattn_tile")
    A.label("Lattn_exit")
    if 'stamp' in EXP:
        A("s_cmp_ge_u32 s2, 256")
        A("s_cbranch_scc1 Lattn_nost")
        A("s_add_u32 s48, s46, 0x8000000"); A("s_addc_u32 s49, s47, 0"); A("s_mov_b32 s50, 0x100000"); A("s_mov_b32 s51, 0x00020000")
        for i in range(8): A(f"v_mov_b32 v{i}, s{64+i}")
        A("s_lshl_b32 s52, s2, 3"); A("s_add_u32 s52, s52, s24"); A("s_lshl_b32 s52, s52, 5")
        A("v_mov_b32 v10, 0")
        A("buffer_store_dwordx4 v[0:3], v10, s[48:51], s52 offen")
        A("buffer_store_dwordx4 v[4:7], v10, s[48:51], s52 offen offset:16")
        A.label("Lattn_nost")
    A("s_endpgm")
```

```python
from gen_common import *
import os
EXP = os.environ.get('EXP', '')

def kernel_attn(A):
    QF, O = 0, 32
    S = [96, 112]; P = [128, 136]; FR = 144; NFR = 8
    vM, vL, vL2, vMC = 176, 177, 178, 179
    vAl = [180, 181]
    vK = [182, 183]; vV = [184, 185]
    vD, vOff, vLane16, vNeg = 186, 187, 188, 189
    T = 192
    NM = 208; vDel = 190; sG = 54
    slow = []
    sF = [50, 51]
    A("s_load_dwordx2 s[46:47], s[0:1], 88")
    A("v_lshrrev_b32 v1, 6, v0")
    A("v_readfirstlane_b32 s24, v1")
    A("s_cmp_ge_u32 s2, 256")
    A("s_cbranch_scc1 Lattn_exit")
    A("s_waitcnt lgkmcnt(0)")
    A("s_lshr_b32 s25, s24, 2")
    A("s_and_b32 s26, s24, 3")
    A("s_and_b32 s3, s2, 7")
    A("s_lshr_b32 s4, s2, 3")
    A("s_and_b32 s5, s4, 3")
    A("s_lshl_b32 s27, s3, 2")
    A("s_add_u32 s27, s27, s5")
    A("s_lshr_b32 s28, s2, 5")
    A("s_lshl_b32 s3, s27, 19")
    for d, off in ((8, WS_K), (12, WS_V), (16, WS_Q)):
        A(f"s_add_u32 s{d}, s46, {off}")
        A(f"s_addc_u32 s{d+1}, s47, 0")
        A(f"s_add_u32 s{d}, s{d}, s3")
        A(f"s_addc_u32 s{d+1}, s{d+1}, 0")
        A(f"s_mov_b32 s{d+2}, 0x80000")
        A(f"s_mov_b32 s{d+3}, 0x00020000")
    srd(A, 20, 46, 0x1000000, WS_C)
    A("s_mov_b32 s44, 0x3e0293ee")
    A("s_mov_b32 s45, 0x41000000")
    A("s_mov_b32 s54, 0")
    A(f"v_and_b32 v{T}, 63, v0")
    A(f"v_lshlrev_b32 v{vLane16}, 4, v{T}")
    A("s_lshl_b32 s3, s25, 14")
    A(f"v_add_u32 v{vK[0]}, s3, v{vLane16}")
    A(f"v_add_u32 v{vK[1]}, 0x8000, v{vK[0]}")
    A(f"v_add_u32 v{vV[0]}, 0x10000, v{vK[0]}")
    A(f"v_add_u32 v{vV[1]}, 0x18000, v{vK[0]}")
    A("s_lshl_b32 s3, s24, 12")
    A(f"v_add_u32 v{vOff}, s3, v{vLane16}")
    A(f"v_and_b32 v{T+1}, 31, v0")
    A(f"v_bfe_u32 v{T+2}, v0, 5, 1")
    A(f"v_lshlrev_b32 v{T+2}, 2, v{T+2}")
    A(f"v_sub_u32 v{vD}, v{T+1}, v{T+2}")
    A("s_lshl_b32 s3, s25, 1")
    A("s_sub_u32 s3, s3, s26")
    A("s_lshl_b32 s3, s3, 5")
    A(f"v_subrev_u32 v{vD}, s3, v{vD}")
    A(f"v_mov_b32 v{vNeg}, 0xf149f2ca")
    A("s_sub_u32 s29, 15, s28")
    A("s_sub_u32 s35, 16, s28")
    A("s_mov_b32 s30, 0"); A("s_mov_b32 s34, 0")
    A("s_lshl_b32 s32, s24, 12")
    A("s_mov_b32 s36, 0"); A("s_mov_b32 s37, 0")
    uid = [0]
    def dma_list(which):
        sr, srdb, base, so = (36, 8, 0, 33) if which == "K" else (37, 12, 0x10000, 31)
        L = []
        L.append(f"s_sub_u32 s3, s{sr}, s35")
        L.append(f"s_cmp_ge_u32 s{sr}, s35")
        L.append(f"s_cselect_b32 s3, s3, s{sr}")
        L.append(f"s_lshl_b32 s{so}, s3, 15")
        L.append(f"s_cmp_ge_u32 s{sr}, 17")
        L.append(f"s_cselect_b32 s{so}, 0x7f000000, s{so}")
        L.append(f"s_and_b32 s4, s{sr}, 1")
        L.append("s_lshl_b32 s4, s4, 15")
        L.append("s_add_u32 s4, s4, s32")
        L.append(f"s_add_u32 m0, s4, {base}")
        L.append(f"s_add_u32 s{sr}, s{sr}, 1")
        loads = [f"buffer_load_dwordx4 v{vOff}, s[{srdb}:{srdb+3}], s{so} offen offset:{i*1024} lds" for i in range(4)]
        return L, loads
    def dma(which):
        L, loads = dma_list(which)
        for l in L + loads: A(l)
    def spread(va, setup, loads):
        out = list(setup); n = len(va); k = len(loads); j = 0
        for i, l in enumerate(va):
            out.append(l)
            while j < k and (i+1) * k >= (j+1) * n * 0.9 and not l.startswith(("s_cmp","s_cbranch","v_cmp")) :
                out.append(loads[j]); j += 1
                break
        out += loads[j:]
        return out
    def init_tile():
        A("s_lshl_b32 s3, s29, 2")
        A("s_add_u32 s3, s3, s26")
        A("s_lshl_b32 s3, s3, 13")
        A(f"v_add_u32 v{T+3}, 4096, v{vLane16}")
        for ks in range(8):
            A(f"buffer_load_dwordx4 {v(QF+4*ks,4)}, v{vLane16 if ks < 4 else T+3}, s[16:19], s3 offen offset:{(ks%4)*1024}")
        for r in range(64): A(f"v_mov_b32 v{O+r}, 0")
        for r in range(16): A(f"v_mov_b32 v{NM+r}, 0")
        A(f"v_mov_b32 v{vM}, 0")
        A(f"v_mov_b32 v{vL}, 0"); A(f"v_mov_b32 v{vL2}, 0")
        A(f"s_mov_b32 s{sG}, 0")
    dma("K"); dma("V"); dma("K")
    init_tile()
    if 'stamp' in EXP:
        for i in range(64, 72): A(f"s_mov_b32 s{i}, 0")

    PRE = 5
    class Seq:
        def __init__(self, pre_issued):
            self.items = []; self.pre = pre_issued
        def phase(self, mf, va, pre_va=0):
            n = len(mf); j = 0
            while j < min(pre_va, len(va)): self.items.append(('raw', va[j])); j += 1
            if n == 0:
                for l in va[j:]: self.items.append(('raw', l))
                return
            rest = len(va) - j; j0 = j
            for k in range(n):
                self.items.append(('mf', mf[k]))
                tgt = j0 + (rest * (k+1)) // n
                while j < tgt: self.items.append(('raw', va[j])); j += 1
        def raw(self, fn): self.items.append(('fn', fn))
        def fence(self): self.items.append(('fence',))
        def tail(self, mf):
            for m in mf[:PRE]: self.items.append(('tail', m))
        def emit(self):
            slots = [i for i, it in enumerate(self.items) if it[0] in ('mf', 'tail')]
            sidx = {i: k for k, i in enumerate(slots)}
            fences = [i for i, it in enumerate(self.items) if it[0] == 'fence']
            issued = self.pre
            def allowed(pos, k):
                return not any(pos < f < slots[k] for f in fences)
            def issue_upto(pos, kmax):
                nonlocal issued
                while issued <= min(kmax, len(slots)-1) and allowed(pos, issued):
                    m = self.items[slots[issued]][1]
                    A(f"ds_read_b128 {v(FR+4*(issued%NFR),4)}, v{m[0]} offset:{m[1]}")
                    issued += 1
            for pos, it in enumerate(self.items):
                if it[0] == 'raw': A(it[1])
                elif it[0] == 'fn': it[1]()
                elif it[0] == 'fence':
                    nxt = [k for k, i in enumerate(slots) if i > pos]
                    if nxt: issue_upto(pos, nxt[0] + PRE - 1)
                elif it[0] == 'mf':
                    k = sidx[pos]
                    issue_upto(pos, k)
                    A(f"s_waitcnt lgkmcnt({issued - k - 1})")
                    A(it[1][2].format(fr=v(FR+4*(k%NFR),4)))
                    issue_upto(pos, k + PRE)
                elif it[0] == 'tail':
                    issue_upto(pos, sidx[pos])
    def qk(x, kreg, b):
        return [(kreg, b*8192 + ks*1024, f"{MFMA} {v(S[x],16)}, {{fr}}, {v(QF+4*ks,4)}, " + (v(NM,16) if ks == 0 else v(S[x],16))) for ks in range(8)]
    def pv(x, vreg, b):
        return [(vreg, b*8192 + (2*dt+t)*1024, f"{MFMA} {v(O+16*dt,16)}, {{fr}}, {v(P[x]+4*t,4)}, {v(O+16*dt,16)}") for t in range(2) for dt in range(4)]
    def smA(x, masked, b, firstblock=False):
        L = []; Sx = S[x]
        uid[0] += 1; k = uid[0]
        if not firstblock:
            L.append(f"s_cmp_lg_u32 s{sG}, 0")
            L.append(f"s_cbranch_scc1 Lattn_fix{k}")
            L.append(f"Lattn_fixb{k}:")
            c = [f"Lattn_fix{k}:"]
            for r in range(16): c.append(f"v_sub_f32 v{Sx+r}, v{Sx+r}, v{vDel}")
            c.append(f"s_mov_b32 s{sG}, 0"); c.append(f"s_branch Lattn_fixb{k}")
            slow.append(c)
        if masked:
            for r in range(16):
                off = (r&3) + 8*(r>>2) + 32*b
                L.append(f"v_cmp_gt_i32 vcc, {off}, v{vD}")
                L.append(f"v_cndmask_b32 v{Sx+r}, v{Sx+r}, v{vNeg}, vcc")
        L.append(f"v_max3_f32 v{T}, v{Sx}, v{Sx+1}, v{Sx+2}")
        L.append(f"v_max3_f32 v{T+1}, v{Sx+3}, v{Sx+4}, v{Sx+5}")
        L.append(f"v_max3_f32 v{T}, v{T}, v{Sx+6}, v{Sx+7}")
        L.append(f"v_max3_f32 v{T+1}, v{T+1}, v{Sx+8}, v{Sx+9}")
        L.append(f"v_max3_f32 v{T}, v{T}, v{Sx+10}, v{Sx+11}")
        L.append(f"v_max3_f32 v{T+1}, v{T+1}, v{Sx+12}, v{Sx+13}")
        L.append(f"v_max3_f32 v{T}, v{T}, v{Sx+14}, v{Sx+15}")
        L.append(f"v_max_f32 v{T}, v{T}, v{T+1}")
        L.append(f"v_mov_b32 v{T+1}, v{T}")
        L.append(f"v_permlane32_swap_b32 v{T}, v{T+1}")
        L.append(f"v_max_f32 v{T}, v{T}, v{T+1}")
        c = [f"Lattn_slow{k}:"]
        if not firstblock: c.append(f"v_max_f32 v{T}, 0, v{T}")
        c.append(f"v_mov_b32 v{vDel}, v{T}")
        for r in range(16): c.append(f"v_sub_f32 v{Sx+r}, v{Sx+r}, v{T}")
        c.append(f"v_add_f32 v{vM}, v{vM}, v{T}")
        c.append(f"v_sub_f32 v{T+1}, 0, v{T}")
        c.append(f"v_exp_f32 v{vAl[x]}, v{T+1}" if not firstblock else f"v_mov_b32 v{vAl[x]}, 1.0")
        c.append(f"v_sub_f32 v{T+1}, 0, v{vM}")
        for r in range(16): c.append(f"v_mov_b32 v{NM+r}, v{T+1}")
        c.append(f"v_mul_f32 v{vL}, v{vL}, v{vAl[x]}")
        c.append(f"v_mul_f32 v{vL2}, v{vL2}, v{vAl[x]}")
        c.append(f"s_mov_b32 s{sF[x]}, {0 if firstblock else 1}"); c.append(f"s_mov_b32 s{sG}, 1")
        c.append(f"s_branch Lattn_back{k}")
        slow.append(c)
        if firstblock:
            L.append(f"s_branch Lattn_slow{k}")
        else:
            L.append(f"v_cmp_lt_f32 vcc, s45, v{T}")
            L.append(f"s_mov_b32 s{sF[x]}, 0")
            L.append(f"s_cmp_lg_u64 vcc, 0")
            L.append(f"s_cbranch_scc1 Lattn_slow{k}")
        L.append(f"Lattn_back{k}:")
        Sx = S[x]
        for r in range(8): L.append(f"v_exp_f32 v{Sx+r}, v{Sx+r}")
        return L
    def smB(x):
        L = []; Sx = S[x]
        for r in range(8, 16): L.append(f"v_exp_f32 v{Sx+r}, v{Sx+r}")
        for r in range(16):
            L.append(f"v_add_f32 v{vL if r&1 else vL2}, v{vL if r&1 else vL2}, v{Sx+r}")
            if r & 1: L.append(f"v_cvt_pk_bf16_f32 v{P[x]+(r>>1)}, v{Sx+r-1}, v{Sx+r}")
        return L
    def rescale(x):
        uid[0] += 1; lab = f"Lattn_rs{uid[0]}"
        A(f"s_cmp_eq_u32 s{sF[x]}, 0")
        A(f"s_cbranch_scc1 {lab}")
        for r in range(64): A(f"v_mul_f32 v{O+r}, v{O+r}, v{vAl[x]}")
        A.label(lab)
    def tstamp(acc):
        if 'stamp' not in EXP: return
        A("s_memtime s[60:61]")
        A("s_waitcnt lgkmcnt(0)")
        if acc is not None:
            A("s_sub_u32 s62, s60, s63")
            A(f"s_add_u32 s{acc}, s{acc}, s62")
        A("s_mov_b32 s63, s60")
    def stage(first, last):
        q = Seq(PRE)
        q.phase(qk(1, vK[0], 1), smA(0, last, 0, first))
        if not first:
            q.raw(lambda: rescale(1))
            q.phase(pv(1, vV[1], 1), smB(0))
        else:
            q.phase([], smB(0))
        def bar():
            A("s_waitcnt vmcnt(0)"); A("s_barrier")
        q.raw(bar); q.fence()
        sv, lv = dma_list("V")
        if not last:
            sk, lk = dma_list("K")
            q.phase(qk(0, vK[1], 0), spread(smA(1, False, 1), sk, lk), pre_va=len(sk))
        else: q.phase([], smA(1, True, 1))
        q.raw(lambda: rescale(0))
        q.phase(pv(0, vV[0], 0), spread(smB(1), sv, lv), pre_va=len(sv))
        if not last: q.tail(qk(1, vK[1], 1))
        else:
            q.raw(lambda: rescale(1))
            q.phase(pv(1, vV[0], 1), [])
        q.emit()
    def swap_par():
        for r in vK + vV: A(f"v_xor_b32 v{r}, 0x8000, v{r}")

    if 'prio' in EXP:
        A("s_cmp_ge_u32 s24, 4")
        A("s_cbranch_scc0 Lattn_noprio")
        A("s_setprio 1")
        A.label("Lattn_noprio")
    A.label("Lattn_tile")
    A("s_waitcnt vmcnt(0)")
    A("s_barrier")
    q0 = Seq(0); q0.phase(qk(0, vK[0], 0), []); q0.tail(qk(1, vK[0], 1)); q0.emit()
    A("s_cmp_eq_u32 s29, 0")
    A("s_cbranch_scc1 Lattn_only")
    stage(True, False)
    swap_par()
    A("s_mov_b32 s30, 1")
    A.label("Lattn_loop")
    A("s_cmp_ge_u32 s30, s29")
    A("s_cbranch_scc1 Lattn_last")
    stage(False, False)
    swap_par()
    A("s_add_u32 s30, s30, 1")
    A("s_branch Lattn_loop")
    A.label("Lattn_last")
    stage(False, True)
    A("s_branch Lattn_fin")
    A.label("Lattn_only")
    stage(True, True)
    A.label("Lattn_fin")
    A(f"v_add_f32 v{vL}, v{vL}, v{vL2}")
    A(f"v_mov_b32 v{T}, v{vL}")
    A(f"v_mov_b32 v{T+1}, v{vL}")
    A(f"v_permlane32_swap_b32 v{T}, v{T+1}")
    A(f"v_add_f32 v{vL}, v{T}, v{T+1}")
    A("s_barrier")
    A(f"v_lshrrev_b32 v{T+2}, 1, v{vLane16}")
    A("s_lshl_b32 s3, s24, 9")
    A("s_add_u32 s3, s3, 131072")
    A(f"v_add_u32 v{T+2}, s3, v{T+2}")
    A(f"v_mov_b32 v{T+6}, v{vM}")
    A(f"v_mov_b32 v{T+7}, v{vL}")
    A(f"ds_write_b64 v{T+2}, {v(T+6,2)}")
    A("s_lshl_b32 s3, s25, 14")
    A(f"v_subrev_u32 v{T+3}, s3, v{vK[0]}")
    A("s_lshl_b32 s3, s26, 13")
    A(f"v_add_u32 v{T+3}, s3, v{T+3}")
    A(f"v_add_u32 v{T+4}, 0x10000, v{T+3}")
    A("s_cmp_eq_u32 s25, 0")
    A("s_cbranch_scc0 Lattn_w1")
    for k in range(8): A(f"ds_write_b128 v{T+3}, {v(O+32+4*k,4)} offset:{k*1024}")
    A("s_branch Lattn_w2")
    A.label("Lattn_w1")
    for k in range(8): A(f"ds_write_b128 v{T+4}, {v(O+4*k,4)} offset:{k*1024}")
    A.label("Lattn_w2")
    A("s_waitcnt lgkmcnt(0)")
    A("s_barrier")
    A(f"v_xor_b32 v{T+2}, 2048, v{T+2}")
    A(f"ds_read_b64 {v(T+6,2)}, v{T+2}")
    A("s_cmp_eq_u32 s25, 0")
    A("s_cbranch_scc0 Lattn_r1")
    for k in range(8): A(f"ds_read_b128 {v(96+4*k,4)}, v{T+4} offset:{k*1024}")
    A("s_branch Lattn_r2")
    A.label("Lattn_r1")
    for k in range(8): A(f"ds_read_b128 {v(96+4*k,4)}, v{T+3} offset:{k*1024}")
    A.label("Lattn_r2")
    A("s_waitcnt lgkmcnt(0)")
    A(f"v_max_f32 v{T}, v{vM}, v{T+6}")
    A(f"v_sub_f32 v{T+1}, v{vM}, v{T}")
    A(f"v_sub_f32 v{T+5}, v{T+6}, v{T}")
    A(f"v_exp_f32 v{T+1}, v{T+1}")
    A(f"v_exp_f32 v{T+5}, v{T+5}")
    A(f"v_mul_f32 v{T+8}, v{vL}, v{T+1}")
    A(f"v_fma_f32 v{T+8}, v{T+7}, v{T+5}, v{T+8}")
    A(f"v_rcp_f32 v{T+8}, v{T+8}")
    A(f"v_mul_f32 v{T+1}, v{T+1}, v{T+8}")
    A(f"v_mul_f32 v{T+5}, v{T+5}, v{T+8}")
    A("s_lshl_b32 s3, s29, 2")
    A("s_add_u32 s3, s3, s26")
    A("s_lshl_b32 s3, s3, 5")
    A("s_add_u32 s3, s3, s27")
    A("s_lshl_b32 s3, s3, 13")
    A("s_lshl_b32 s4, s25, 12")
    A("s_add_u32 s3, s3, s4")
    def fin(ob):
        for k in range(4):
            for j in range(8):
                A(f"v_mul_f32 v{96+8*k+j}, v{96+8*k+j}, v{T+5}")
                A(f"v_fma_f32 v{96+8*k+j}, v{ob+8*k+j}, v{T+1}, v{96+8*k+j}")
            for j in range(4):
                A(f"v_cvt_pk_bf16_f32 v{128+4*k+j}, v{96+8*k+2*j}, v{96+8*k+2*j+1}")
            A(f"buffer_store_dwordx4 {v(128+4*k,4)}, v{vLane16}, s[20:23], s3 offen offset:{k*1024}")
    A("s_cmp_eq_u32 s25, 0")
    A("s_cbranch_scc0 Lattn_f1")
    fin(O)
    A("s_branch Lattn_f2")
    A.label("Lattn_f1")
    fin(O+32)
    A.label("Lattn_f2")
    A("s_cmp_eq_u32 s34, 1")
    A("s_cbranch_scc1 Lattn_exit")
    A("s_mov_b32 s34, 1")
    A("s_mov_b32 s29, s28")
    swap_par()
    A("s_barrier")
    dma("K")
    init_tile()
    A("s_branch Lattn_tile")
    A("s_endpgm")
    for c in slow:
        for l in c: A(l)
    A.label("Lattn_exit")
    if 'stamp' in EXP:
        A("s_cmp_ge_u32 s2, 256")
        A("s_cbranch_scc1 Lattn_nost")
        A("s_add_u32 s48, s46, 0x8000000"); A("s_addc_u32 s49, s47, 0"); A("s_mov_b32 s50, 0x100000"); A("s_mov_b32 s51, 0x00020000")
        for i in range(8): A(f"v_mov_b32 v{i}, s{64+i}")
        A("s_lshl_b32 s52, s2, 3"); A("s_add_u32 s52, s52, s24"); A("s_lshl_b32 s52, s52, 5")
        A("v_mov_b32 v10, 0")
        A("buffer_store_dwordx4 v[0:3], v10, s[48:51], s52 offen")
        A("buffer_store_dwordx4 v[4:7], v10, s[48:51], s52 offen offset:16")
        A.label("Lattn_nost")
    A("s_endpgm")
```

```python
from gen_common import *
import os
EXP = os.environ.get('EXP', '')

def kernel_attn(A):
    QF, O = 0, 32
    S = [96, 112]; P = [128, 136]; FR = 144; NFR = 8
    vM, vL, vL2, vMC = 176, 177, 178, 179
    vAl = [180, 181]
    vK = [182, 183]; vV = [184, 185]
    vD, vOff, vLane16, vNeg = 186, 187, 188, 189
    T = 192
    NM = 208; vDel = 190; sG = 54
    slow = []
    sF = [50, 51]
    A("s_load_dwordx2 s[46:47], s[0:1], 88")
    A("v_lshrrev_b32 v1, 6, v0")
    A("v_readfirstlane_b32 s24, v1")
    A("s_cmp_ge_u32 s2, 256")
    A("s_cbranch_scc1 Lattn_exit")
    A("s_waitcnt lgkmcnt(0)")
    A("s_lshr_b32 s25, s24, 2")
    A("s_and_b32 s26, s24, 3")
    A("s_and_b32 s3, s2, 7")
    A("s_lshr_b32 s4, s2, 3")
    A("s_and_b32 s5, s4, 3")
    A("s_lshl_b32 s27, s3, 2")
    A("s_add_u32 s27, s27, s5")
    A("s_lshr_b32 s28, s2, 5")
    A("s_lshl_b32 s3, s27, 19")
    for d, off in ((8, WS_K), (12, WS_V), (16, WS_Q)):
        A(f"s_add_u32 s{d}, s46, {off}")
        A(f"s_addc_u32 s{d+1}, s47, 0")
        A(f"s_add_u32 s{d}, s{d}, s3")
        A(f"s_addc_u32 s{d+1}, s{d+1}, 0")
        A(f"s_mov_b32 s{d+2}, 0x80000")
        A(f"s_mov_b32 s{d+3}, 0x00020000")
    srd(A, 20, 46, 0x1000000, WS_C)
    A("s_mov_b32 s44, 0x3e0293ee")
    A("s_mov_b32 s45, 0x41000000")
    A("s_mov_b32 s54, 0")
    A(f"v_and_b32 v{T}, 63, v0")
    A(f"v_lshlrev_b32 v{vLane16}, 4, v{T}")
    A("s_lshl_b32 s3, s25, 14")
    A(f"v_add_u32 v{vK[0]}, s3, v{vLane16}")
    A(f"v_add_u32 v{vK[1]}, 0x8000, v{vK[0]}")
    A(f"v_add_u32 v{vV[0]}, 0x10000, v{vK[0]}")
    A(f"v_add_u32 v{vV[1]}, 0x18000, v{vK[0]}")
    A("s_lshl_b32 s3, s24, 12")
    A(f"v_add_u32 v{vOff}, s3, v{vLane16}")
    A(f"v_and_b32 v{T+1}, 31, v0")
    A(f"v_bfe_u32 v{T+2}, v0, 5, 1")
    A(f"v_lshlrev_b32 v{T+2}, 2, v{T+2}")
    A(f"v_sub_u32 v{vD}, v{T+1}, v{T+2}")
    A("s_lshl_b32 s3, s25, 1")
    A("s_sub_u32 s3, s3, s26")
    A("s_lshl_b32 s3, s3, 5")
    A(f"v_subrev_u32 v{vD}, s3, v{vD}")
    A(f"v_mov_b32 v{vNeg}, 0xf149f2ca")
    A("s_sub_u32 s29, 15, s28")
    A("s_sub_u32 s35, 16, s28")
    A("s_mov_b32 s30, 0"); A("s_mov_b32 s34, 0")
    A("s_lshl_b32 s32, s24, 12")
    A("s_mov_b32 s36, 0"); A("s_mov_b32 s37, 0")
    uid = [0]
    def dma_list(which):
        sr, srdb, base, so = (36, 8, 0, 33) if which == "K" else (37, 12, 0x10000, 31)
        L = []
        L.append(f"s_sub_u32 s3, s{sr}, s35")
        L.append(f"s_cmp_ge_u32 s{sr}, s35")
        L.append(f"s_cselect_b32 s3, s3, s{sr}")
        L.append(f"s_lshl_b32 s{so}, s3, 15")
        L.append(f"s_cmp_ge_u32 s{sr}, 17")
        L.append(f"s_cselect_b32 s{so}, 0x7f000000, s{so}")
        L.append(f"s_and_b32 s4, s{sr}, 1")
        L.append("s_lshl_b32 s4, s4, 15")
        L.append("s_add_u32 s4, s4, s32")
        L.append(f"s_add_u32 m0, s4, {base}")
        L.append(f"s_add_u32 s{sr}, s{sr}, 1")
        loads = [f"buffer_load_dwordx4 v{vOff}, s[{srdb}:{srdb+3}], s{so} offen offset:{i*1024} lds" for i in range(4)]
        return L, loads
    def dma(which):
        L, loads = dma_list(which)
        for l in L + loads: A(l)
    def spread(va, setup, loads):
        out = list(setup); n = len(va); k = len(loads); j = 0
        for i, l in enumerate(va):
            out.append(l)
            while j < k and (i+1) * k >= (j+1) * n * 0.9 and not l.startswith(("s_cmp","s_cbranch","v_cmp")) :
                out.append(loads[j]); j += 1
                break
        out += loads[j:]
        return out
    def init_tile():
        A("s_lshl_b32 s3, s29, 2")
        A("s_add_u32 s3, s3, s26")
        A("s_lshl_b32 s3, s3, 13")
        A(f"v_add_u32 v{T+3}, 4096, v{vLane16}")
        for ks in range(8):
            A(f"buffer_load_dwordx4 {v(QF+4*ks,4)}, v{vLane16 if ks < 4 else T+3}, s[16:19], s3 offen offset:{(ks%4)*1024}")
        for r in range(64): A(f"v_mov_b32 v{O+r}, 0")
        for r in range(16): A(f"v_mov_b32 v{NM+r}, 0")
        A(f"v_mov_b32 v{vM}, 0")
        A(f"v_mov_b32 v{vL}, 0"); A(f"v_mov_b32 v{vL2}, 0")
        A(f"s_mov_b32 s{sG}, 0")
    dma("K"); dma("V"); dma("K")
    init_tile()
    if 'stamp' in EXP:
        for i in range(64, 72): A(f"s_mov_b32 s{i}, 0")

    PRE = 5
    class Seq:
        def __init__(self, pre_issued):
            self.items = []; self.pre = pre_issued
        def phase(self, mf, va, pre_va=0):
            n = len(mf); j = 0
            while j < min(pre_va, len(va)): self.items.append(('raw', va[j])); j += 1
            if n == 0:
                for l in va[j:]: self.items.append(('raw', l))
                return
            rest = len(va) - j; j0 = j
            for k in range(n):
                self.items.append(('mf', mf[k]))
                tgt = j0 + (rest * (k+1)) // n
                while j < tgt: self.items.append(('raw', va[j])); j += 1
        def raw(self, fn): self.items.append(('fn', fn))
        def fence(self): self.items.append(('fence',))
        def tail(self, mf):
            for m in mf[:PRE]: self.items.append(('tail', m))
        def emit(self):
            slots = [i for i, it in enumerate(self.items) if it[0] in ('mf', 'tail')]
            sidx = {i: k for k, i in enumerate(slots)}
            fences = [i for i, it in enumerate(self.items) if it[0] == 'fence']
            issued = self.pre
            def allowed(pos, k):
                return not any(pos < f < slots[k] for f in fences)
            def issue_upto(pos, kmax):
                nonlocal issued
                while issued <= min(kmax, len(slots)-1) and allowed(pos, issued):
                    m = self.items[slots[issued]][1]
                    A(f"ds_read_b128 {v(FR+4*(issued%NFR),4)}, v{m[0]} offset:{m[1]}")
                    issued += 1
            for pos, it in enumerate(self.items):
                if it[0] == 'raw': A(it[1])
                elif it[0] == 'fn': it[1]()
                elif it[0] == 'fence':
                    nxt = [k for k, i in enumerate(slots) if i > pos]
                    if nxt: issue_upto(pos, nxt[0] + PRE - 1)
                elif it[0] == 'mf':
                    k = sidx[pos]
                    issue_upto(pos, k)
                    A(f"s_waitcnt lgkmcnt({issued - k - 1})")
                    A(it[1][2].format(fr=v(FR+4*(k%NFR),4)))
                    issue_upto(pos, k + PRE)
                elif it[0] == 'tail':
                    issue_upto(pos, sidx[pos])
    def qk(x, kreg, b):
        return [(kreg, b*8192 + ks*1024, f"{MFMA} {v(S[x],16)}, {{fr}}, {v(QF+4*ks,4)}, " + (v(NM,16) if ks == 0 else v(S[x],16))) for ks in range(8)]
    def pv(x, vreg, b):
        return [(vreg, b*8192 + (2*dt+t)*1024, f"{MFMA} {v(O+16*dt,16)}, {{fr}}, {v(P[x]+4*t,4)}, {v(O+16*dt,16)}") for t in range(2) for dt in range(4)]
    def smA(x, masked, b, firstblock=False):
        L = []; Sx = S[x]
        uid[0] += 1; k = uid[0]
        if not firstblock:
            L.append(f"s_cmp_lg_u32 s{sG}, 0")
            L.append(f"s_cbranch_scc1 Lattn_fix{k}")
            L.append(f"Lattn_fixb{k}:")
            c = [f"Lattn_fix{k}:"]
            for r in range(16): c.append(f"v_sub_f32 v{Sx+r}, v{Sx+r}, v{vDel}")
            c.append(f"s_mov_b32 s{sG}, 0"); c.append(f"s_branch Lattn_fixb{k}")
            slow.append(c)
        if masked:
            for r in range(16):
                off = (r&3) + 8*(r>>2) + 32*b
                L.append(f"v_cmp_gt_i32 vcc, {off}, v{vD}")
                L.append(f"v_cndmask_b32 v{Sx+r}, v{Sx+r}, v{vNeg}, vcc")
        L.append(f"v_max3_f32 v{T}, v{Sx}, v{Sx+1}, v{Sx+2}")
        L.append(f"v_max3_f32 v{T+1}, v{Sx+3}, v{Sx+4}, v{Sx+5}")
        L.append(f"v_max3_f32 v{T}, v{T}, v{Sx+6}, v{Sx+7}")
        L.append(f"v_max3_f32 v{T+1}, v{T+1}, v{Sx+8}, v{Sx+9}")
        L.append(f"v_max3_f32 v{T}, v{T}, v{Sx+10}, v{Sx+11}")
        L.append(f"v_max3_f32 v{T+1}, v{T+1}, v{Sx+12}, v{Sx+13}")
        L.append(f"v_max3_f32 v{T}, v{T}, v{Sx+14}, v{Sx+15}")
        L.append(f"v_max_f32 v{T}, v{T}, v{T+1}")
        L.append(f"v_mov_b32 v{T+1}, v{T}")
        L.append(f"v_permlane32_swap_b32 v{T}, v{T+1}")
        L.append(f"v_max_f32 v{T}, v{T}, v{T+1}")
        c = [f"Lattn_slow{k}:"]
        if not firstblock: c.append(f"v_max_f32 v{T}, 0, v{T}")
        c.append(f"v_mov_b32 v{vDel}, v{T}")
        for r in range(16): c.append(f"v_sub_f32 v{Sx+r}, v{Sx+r}, v{T}")
        c.append(f"v_add_f32 v{vM}, v{vM}, v{T}")
        c.append(f"v_sub_f32 v{T+1}, 0, v{T}")
        c.append(f"v_exp_f32 v{vAl[x]}, v{T+1}" if not firstblock else f"v_mov_b32 v{vAl[x]}, 1.0")
        c.append(f"v_sub_f32 v{T+1}, 0, v{vM}")
        for r in range(16): c.append(f"v_mov_b32 v{NM+r}, v{T+1}")
        c.append(f"v_mul_f32 v{vL}, v{vL}, v{vAl[x]}")
        c.append(f"v_mul_f32 v{vL2}, v{vL2}, v{vAl[x]}")
        c.append(f"s_mov_b32 s{sF[x]}, {0 if firstblock else 1}"); c.append(f"s_mov_b32 s{sG}, 1")
        c.append(f"s_branch Lattn_back{k}")
        slow.append(c)
        if firstblock:
            L.append(f"s_branch Lattn_slow{k}")
        else:
            L.append(f"v_cmp_lt_f32 vcc, s45, v{T}")
            L.append(f"s_mov_b32 s{sF[x]}, 0")
            L.append(f"s_cmp_lg_u64 vcc, 0")
            L.append(f"s_cbranch_scc1 Lattn_slow{k}")
        L.append(f"Lattn_back{k}:")
        Sx = S[x]
        for r in range(8): L.append(f"v_exp_f32 v{Sx+r}, v{Sx+r}")
        return L
    def smB(x):
        L = []; Sx = S[x]
        for r in range(8, 16): L.append(f"v_exp_f32 v{Sx+r}, v{Sx+r}")
        for r in range(16):
            L.append(f"v_add_f32 v{vL if r&1 else vL2}, v{vL if r&1 else vL2}, v{Sx+r}")
            if r & 1: L.append(f"v_cvt_pk_bf16_f32 v{P[x]+(r>>1)}, v{Sx+r-1}, v{Sx+r}")
        return L
    def rescale(x):
        uid[0] += 1; lab = f"Lattn_rs{uid[0]}"
        A(f"s_cmp_eq_u32 s{sF[x]}, 0")
        A(f"s_cbranch_scc1 {lab}")
        for r in range(64): A(f"v_mul_f32 v{O+r}, v{O+r}, v{vAl[x]}")
        A.label(lab)
    def tstamp(acc):
        if 'stamp' not in EXP: return
        A("s_memtime s[60:61]")
        A("s_waitcnt lgkmcnt(0)")
        if acc is not None:
            A("s_sub_u32 s62, s60, s63")
            A(f"s_add_u32 s{acc}, s{acc}, s62")
        A("s_mov_b32 s63, s60")
    def ilv(a, b):
        out = []
        for i in range(max(len(a), len(b))):
            if i < len(a): out.append(a[i])
            if i < len(b): out.append(b[i])
        return out
    def stage(first, last):
        q = Seq(PRE)
        if not first:
            q.raw(lambda: rescale(1))
            q.phase(ilv(qk(1, vK[0], 1), pv(1, vV[1], 1)), smA(0, last, 0, first) + smB(0))
        else:
            q.phase(qk(1, vK[0], 1), smA(0, last, 0, first) + smB(0))
        def bar():
            A("s_waitcnt vmcnt(0)"); A("s_barrier")
        q.raw(bar); q.fence()
        sv, lv = dma_list("V")
        q.raw(lambda: rescale(0))
        if not last:
            sk, lk = dma_list("K")
            va = spread(smA(1, False, 1), sk, lk) + spread(smB(1), sv, lv)
            q.phase(ilv(qk(0, vK[1], 0), pv(0, vV[0], 0)), va, pre_va=len(sk))
        else:
            q.phase(pv(0, vV[0], 0), smA(1, True, 1) + spread(smB(1), sv, lv))
        if not last: q.tail(ilv(qk(1, vK[1], 1), pv(1, vV[0], 1)))
        else:
            q.raw(lambda: rescale(1))
            q.phase(pv(1, vV[0], 1), [])
        q.emit()
    def swap_par():
        for r in vK + vV: A(f"v_xor_b32 v{r}, 0x8000, v{r}")

    if 'prio' in EXP:
        A("s_cmp_ge_u32 s24, 4")
        A("s_cbranch_scc0 Lattn_noprio")
        A("s_setprio 1")
        A.label("Lattn_noprio")
    A.label("Lattn_tile")
    A("s_waitcnt vmcnt(0)")
    A("s_barrier")
    q0 = Seq(0); q0.phase(qk(0, vK[0], 0), []); q0.tail(qk(1, vK[0], 1)); q0.emit()
    A("s_cmp_eq_u32 s29, 0")
    A("s_cbranch_scc1 Lattn_only")
    stage(True, False)
    swap_par()
    A("s_mov_b32 s30, 1")
    A.label("Lattn_loop")
    A("s_cmp_ge_u32 s30, s29")
    A("s_cbranch_scc1 Lattn_last")
    stage(False, False)
    swap_par()
    A("s_add_u32 s30, s30, 1")
    A("s_branch Lattn_loop")
    A.label("Lattn_last")
    stage(False, True)
    A("s_branch Lattn_fin")
    A.label("Lattn_only")
    stage(True, True)
    A.label("Lattn_fin")
    A(f"v_add_f32 v{vL}, v{vL}, v{vL2}")
    A(f"v_mov_b32 v{T}, v{vL}")
    A(f"v_mov_b32 v{T+1}, v{vL}")
    A(f"v_permlane32_swap_b32 v{T}, v{T+1}")
    A(f"v_add_f32 v{vL}, v{T}, v{T+1}")
    A("s_barrier")
    A(f"v_lshrrev_b32 v{T+2}, 1, v{vLane16}")
    A("s_lshl_b32 s3, s24, 9")
    A("s_add_u32 s3, s3, 131072")
    A(f"v_add_u32 v{T+2}, s3, v{T+2}")
    A(f"v_mov_b32 v{T+6}, v{vM}")
    A(f"v_mov_b32 v{T+7}, v{vL}")
    A(f"ds_write_b64 v{T+2}, {v(T+6,2)}")
    A("s_lshl_b32 s3, s25, 14")
    A(f"v_subrev_u32 v{T+3}, s3, v{vK[0]}")
    A("s_lshl_b32 s3, s26, 13")
    A(f"v_add_u32 v{T+3}, s3, v{T+3}")
    A(f"v_add_u32 v{T+4}, 0x10000, v{T+3}")
    A("s_cmp_eq_u32 s25, 0")
    A("s_cbranch_scc0 Lattn_w1")
    for k in range(8): A(f"ds_write_b128 v{T+3}, {v(O+32+4*k,4)} offset:{k*1024}")
    A("s_branch Lattn_w2")
    A.label("Lattn_w1")
    for k in range(8): A(f"ds_write_b128 v{T+4}, {v(O+4*k,4)} offset:{k*1024}")
    A.label("Lattn_w2")
    A("s_waitcnt lgkmcnt(0)")
    A("s_barrier")
    A(f"v_xor_b32 v{T+2}, 2048, v{T+2}")
    A(f"ds_read_b64 {v(T+6,2)}, v{T+2}")
    A("s_cmp_eq_u32 s25, 0")
    A("s_cbranch_scc0 Lattn_r1")
    for k in range(8): A(f"ds_read_b128 {v(96+4*k,4)}, v{T+4} offset:{k*1024}")
    A("s_branch Lattn_r2")
    A.label("Lattn_r1")
    for k in range(8): A(f"ds_read_b128 {v(96+4*k,4)}, v{T+3} offset:{k*1024}")
    A.label("Lattn_r2")
    A("s_waitcnt lgkmcnt(0)")
    A(f"v_max_f32 v{T}, v{vM}, v{T+6}")
    A(f"v_sub_f32 v{T+1}, v{vM}, v{T}")
    A(f"v_sub_f32 v{T+5}, v{T+6}, v{T}")
    A(f"v_exp_f32 v{T+1}, v{T+1}")
    A(f"v_exp_f32 v{T+5}, v{T+5}")
    A(f"v_mul_f32 v{T+8}, v{vL}, v{T+1}")
    A(f"v_fma_f32 v{T+8}, v{T+7}, v{T+5}, v{T+8}")
    A(f"v_rcp_f32 v{T+8}, v{T+8}")
    A(f"v_mul_f32 v{T+1}, v{T+1}, v{T+8}")
    A(f"v_mul_f32 v{T+5}, v{T+5}, v{T+8}")
    A("s_lshl_b32 s3, s29, 2")
    A("s_add_u32 s3, s3, s26")
    A("s_lshl_b32 s3, s3, 5")
    A("s_add_u32 s3, s3, s27")
    A("s_lshl_b32 s3, s3, 13")
    A("s_lshl_b32 s4, s25, 12")
    A("s_add_u32 s3, s3, s4")
    def fin(ob):
        for k in range(4):
            for j in range(8):
                A(f"v_mul_f32 v{96+8*k+j}, v{96+8*k+j}, v{T+5}")
                A(f"v_fma_f32 v{96+8*k+j}, v{ob+8*k+j}, v{T+1}, v{96+8*k+j}")
            for j in range(4):
                A(f"v_cvt_pk_bf16_f32 v{128+4*k+j}, v{96+8*k+2*j}, v{96+8*k+2*j+1}")
            A(f"buffer_store_dwordx4 {v(128+4*k,4)}, v{vLane16}, s[20:23], s3 offen offset:{k*1024}")
    A("s_cmp_eq_u32 s25, 0")
    A("s_cbranch_scc0 Lattn_f1")
    fin(O)
    A("s_branch Lattn_f2")
    A.label("Lattn_f1")
    fin(O+32)
    A.label("Lattn_f2")
    A("s_cmp_eq_u32 s34, 1")
    A("s_cbranch_scc1 Lattn_exit")
    A("s_mov_b32 s34, 1")
    A("s_mov_b32 s29, s28")
    swap_par()
    A("s_barrier")
    dma("K")
    init_tile()
    A("s_branch Lattn_tile")
    A("s_endpgm")
    for c in slow:
        for l in c: A(l)
    A.label("Lattn_exit")
    if 'stamp' in EXP:
        A("s_cmp_ge_u32 s2, 256")
        A("s_cbranch_scc1 Lattn_nost")
        A("s_add_u32 s48, s46, 0x8000000"); A("s_addc_u32 s49, s47, 0"); A("s_mov_b32 s50, 0x100000"); A("s_mov_b32 s51, 0x00020000")
        for i in range(8): A(f"v_mov_b32 v{i}, s{64+i}")
        A("s_lshl_b32 s52, s2, 3"); A("s_add_u32 s52, s52, s24"); A("s_lshl_b32 s52, s52, 5")
        A("v_mov_b32 v10, 0")
        A("buffer_store_dwordx4 v[0:3], v10, s[48:51], s52 offen")
        A("buffer_store_dwordx4 v[4:7], v10, s[48:51], s52 offen offset:16")
        A.label("Lattn_nost")
    A("s_endpgm")
```

```python
from gen_common import *
import struct
def f2u(x): return struct.unpack("<I", struct.pack("<f", x))[0]

def mod576(A, dst, src, tmp):
    A(f"v_mul_hi_u32 v{tmp}, v{src}, s38")
    A(f"v_mul_lo_u32 v{tmp}, v{tmp}, s37")
    A(f"v_sub_u32 v{dst}, v{src}, v{tmp}")

def body_s1(A, tag="s1"):
    ACC = 0
    FD = 32
    FC = 40
    AD = 56
    VO = 60
    T = 64
    CB = 65536
    A("s_load_dwordx2 s[40:41], s[0:1], 48")
    A("s_load_dwordx2 s[46:47], s[0:1], 88")
    A("v_lshrrev_b32 v1, 6, v0")
    A("v_readfirstlane_b32 s24, v1")
    A("s_waitcnt lgkmcnt(0)")
    A("s_and_b32 s25, s2, 7")
    A("s_lshr_b32 s26, s2, 3")
    srd(A, 8, 40, 2048*1152)
    srd(A, 12, 46, 576*4096, WS_X1)
    A(f"v_and_b32 v{T}, 63, v0")
    A(f"v_and_b32 v{T+1}, 31, v0")
    A(f"v_bfe_u32 v{T+2}, v0, 5, 1")
    A(f"v_lshrrev_b32 v{T+5}, 3, v{T}")
    A(f"v_and_b32 v{T+6}, 7, v{T}")
    A("s_lshl_b32 s3, s25, 3")
    A("s_add_u32 s3, s3, s24")
    A("s_movk_i32 s4, 1152")
    for i in range(4):
        A(f"v_add_u32 v{T+7}, {i*8}, v{T+5}")
        A(f"v_bfe_u32 v{T+8}, v{T+7}, 1, 3")
        A(f"v_xor_b32 v{T+8}, v{T+8}, v{T+6}")
        A(f"v_lshlrev_b32 v{T+7}, 6, v{T+7}")
        A(f"v_add_u32 v{T+7}, s3, v{T+7}")
        A(f"v_mul_lo_u32 v{T+7}, v{T+7}, s4")
        A(f"v_lshl_add_u32 v{VO+i}, v{T+8}, 4, v{T+7}")
    A("s_lshl_b32 s28, s24, 12")
    A("s_mov_b32 s30, 0")
    def dma():
        for i in range(4):
            A(f"s_add_u32 m0, s28, {i*1024}")
            A(f"buffer_load_dwordx4 v{VO+i}, s[8:11], s30 offen lds")
        A("s_add_u32 s30, s30, 128"); A("s_xor_b32 s28, s28, 0x8000")
    dma()
    A("s_lshl_b32 s3, s24, 12")
    A(f"v_lshlrev_b32 v{T+3}, 7, v{T+1}")
    A(f"v_add_u32 v{T+3}, s3, v{T+3}")
    A(f"v_bfe_u32 v{T+4}, v0, 1, 3")
    for ks in range(4):
        A(f"v_or_b32 v{T+5}, {2*ks}, v{T+2}")
        A(f"v_xor_b32 v{T+5}, v{T+5}, v{T+4}")
        A(f"v_lshl_add_u32 v{AD+ks}, v{T+5}, 4, v{T+3}")
    A("s_mov_b32 s36, %d" % f2u(1.0/576.0)); A("s_movk_i32 s37, 576"); A("s_mov_b32 s38, 7456541")
    A(f"v_lshlrev_b32 v{T+20}, 4, v{T}")
    for c in range(2):
        A("s_lshl_b32 s3, s26, 6")
        A(f"s_add_u32 s3, s3, {32*c}")
        A(f"v_add_u32 v{T+3}, s3, v{T+1}")
        A(f"v_cmp_lt_u32 vcc, 288, v{T+3}")
        A(f"v_subrev_u32 v{T+4}, 288, v{T+3}")
        A(f"v_cndmask_b32 v{T+22+2*c}, v{T+3}, v{T+4}, vcc")
        A(f"v_mov_b32 v{T+5}, 0")
        A(f"v_mov_b32 v{T+6}, 0x3e800000")
        A(f"v_cndmask_b32 v{T+23+2*c}, v{T+5}, v{T+6}, vcc")
    for n in range(9):
        A(f"s_add_u32 s3, s24, {8*n}")
        A("s_cmp_ge_u32 s3, 36")
        A("s_cselect_b32 s4, 1, 0")
        A("s_mul_i32 s5, s4, 36")
        A("s_sub_u32 s5, s3, s5")
        A("s_lshl_b32 s6, s5, 4")
        A(f"v_mov_b32 v{T+9}, s4")
        A(f"v_cmp_eq_u32 vcc, 1, v{T+9}")
        A(f"v_cndmask_b32 v{T+10}, v{T+22}, v{T+24}, vcc")
        A(f"v_cndmask_b32 v{T+11}, v{T+23}, v{T+25}, vcc")
        for jj in range(8):
            A(f"v_lshl_add_u32 v{T+7}, v{T+2}, 3, {jj}")
            A(f"v_add_u32 v{T+7}, s6, v{T+7}")
            A(f"v_mul_lo_u32 v{T+7}, v{T+7}, v{T+10}")
            mod576(A, T+7, T+7, T+8)
            A(f"v_cvt_f32_u32 v{T+7}, v{T+7}")
            A(f"v_fma_f32 v{T+7}, v{T+7}, s36, v{T+11}")
            A(f"v_cos_f32 v{T+12+jj}, v{T+7}")
        for p in range(4):
            A(f"v_cvt_pk_bf16_f32 v{T+28+p}, v{T+12+2*p}, v{T+13+2*p}")
        A("s_lshl_b32 s3, s3, 10")
        A(f"s_add_u32 s3, s3, {CB}")
        A(f"v_add_u32 v{T+9}, s3, v{T+20}")
        A(f"ds_write_b128 v{T+9}, {v(T+28,4)}")
    A(f"v_add_u32 v{T+21}, {CB}, v{T+20}")
    A(f"v_add_u32 v{T+22}, {CB+36*1024}, v{T+20}")
    for r in range(32): A(f"v_mov_b32 v{ACC+r}, 0")
    for it in range(9):
        A("s_waitcnt vmcnt(0) lgkmcnt(0)")
        A("s_barrier")
        if it < 8: dma()
        for ks in range(4):
            kk = it*4 + ks
            A(f"ds_read_b128 {v(FD+4*(ks&1),4)}, v{AD+ks}")
            A(f"ds_read_b128 {v(FC+8*(ks&1),4)}, v{T+21} offset:{kk*1024}")
            A(f"ds_read_b128 {v(FC+8*(ks&1)+4,4)}, v{T+22} offset:{kk*1024}")
            if ks > 0:
                p = (ks-1)&1
                A("s_waitcnt lgkmcnt(3)")
                for c in range(2):
                    A(f"{MFMA} {v(ACC+16*c,16)}, {v(FD+4*p,4)}, {v(FC+8*p+4*c,4)}, {v(ACC+16*c,16)}")
        A("s_waitcnt lgkmcnt(0)")
        for c in range(2):
            A(f"{MFMA} {v(ACC+16*c,16)}, {v(FD+4,4)}, {v(FC+8+4*c,4)}, {v(ACC+16*c,16)}")
        for k in range(4): A(f"v_xor_b32 v{AD+k}, 0x8000, v{AD+k}")
    A("s_lshl_b32 s3, s25, 3"); A("s_add_u32 s3, s3, s24")
    A("s_lshr_b32 s4, s3, 5"); A("s_lshl_b32 s4, s4, 11")
    A("s_and_b32 s3, s3, 31"); A("s_lshl_b32 s3, s3, 4"); A("s_add_u32 s3, s3, s4")
    for c in range(2):
        A("s_lshl_b32 s4, s26, 6")
        A(f"s_add_u32 s4, s4, {32*c}")
        A(f"v_add_u32 v{T+3}, s4, v{T+1}")
        A(f"v_lshlrev_b32 v{T+3}, 12, v{T+3}")
        A(f"v_lshl_add_u32 v{T+3}, v{T+2}, 9, v{T+3}")
        for p in range(8):
            A(f"v_cvt_pk_bf16_f32 v{T+12+p}, v{ACC+16*c+2*p}, v{ACC+16*c+2*p+1}")
        A(f"buffer_store_dwordx4 {v(T+12,4)}, v{T+3}, s[12:15], s3 offen")
        A(f"buffer_store_dwordx4 {v(T+16,4)}, v{T+3}, s[12:15], s3 offen offset:1024")
    A("s_endpgm")

def body_s3(A, tag="s3"):
    ACC = 0
    FD = 32
    FC = 180
    T = 196
    A("s_load_dwordx2 s[42:43], s[0:1], 72")
    A("s_load_dwordx2 s[46:47], s[0:1], 88")
    A("v_lshrrev_b32 v1, 6, v0")
    A("v_readfirstlane_b32 s24, v1")
    A("s_waitcnt lgkmcnt(0)")
    A("s_and_b32 s25, s2, 7")
    A("s_lshr_b32 s26, s2, 3")
    srd(A, 8, 46, 64*37*1024, WS_Y)
    srd(A, 12, 42, 2048*2304)
    A(f"v_and_b32 v{T}, 63, v0")
    A(f"v_and_b32 v{T+1}, 31, v0")
    A(f"v_bfe_u32 v{T+2}, v0, 5, 1")
    A(f"v_lshlrev_b32 v{T+20}, 4, v{T}")
    A("s_lshl_b32 s27, s25, 3"); A("s_add_u32 s27, s27, s24")
    A(f"s_mul_i32 s3, s27, {37*1024}")
    A(f"v_add_u32 v{T+21}, s3, v{T+20}")
    for ks in range(37):
        if ks % 4 == 0 and ks: A(f"v_add_u32 v{T+21}, 4096, v{T+21}")
        A(f"buffer_load_dwordx4 {v(FD+4*ks,4)}, v{T+21}, s[8:11], 0 offen offset:{(ks%4)*1024}")
    A("s_mov_b32 s36, %d" % f2u(1.0/576.0)); A("s_movk_i32 s37, 576"); A("s_mov_b32 s38, 7456541")
    A(f"s_mov_b32 s39, {f2u(2.0/(2048*576))}")
    for n in range(10):
        A(f"s_add_u32 s3, s24, {8*n}")
        if n == 9:
            A("s_cmp_ge_u32 s3, 74")
            A(f"s_cbranch_scc1 L{tag}_gend")
        A("s_cmp_ge_u32 s3, 37")
        A("s_cselect_b32 s4, 1, 0")
        A("s_mul_i32 s5, s4, 37")
        A("s_sub_u32 s5, s3, s5")
        A("s_lshl_b32 s6, s26, 6"); A("s_lshl_b32 s7, s4, 5"); A("s_add_u32 s6, s6, s7")
        A(f"v_add_u32 v{T+3}, s6, v{T+1}")
        A("s_lshl_b32 s6, s5, 3")
        for q in range(4):
            A(f"v_lshl_add_u32 v{T+7}, v{T+2}, 2, {q}")
            A(f"v_add_u32 v{T+7}, s6, v{T+7}")
            A(f"v_mul_lo_u32 v{T+8}, v{T+7}, v{T+3}")
            mod576(A, T+8, T+8, T+9)
            A(f"v_cvt_f32_u32 v{T+8}, v{T+8}")
            A(f"v_mov_b32 v{T+9}, 0x3e800000")
            A(f"v_fma_f32 v{T+13+2*q}, v{T+8}, s36, v{T+9}")
            A(f"v_mul_f32 v{T+12+2*q}, s36, v{T+8}")
            A(f"v_cos_f32 v{T+12+2*q}, v{T+12+2*q}")
            A(f"v_cos_f32 v{T+13+2*q}, v{T+13+2*q}")
            A(f"v_mov_b32 v{T+9}, s39")
            A(f"v_mul_f32 v{T+10}, 0.5, v{T+9}")
            A(f"v_cmp_eq_u32 vcc, 0, v{T+7}")
            A(f"v_cmp_eq_u32 s[6:7], 0x120, v{T+7}") if False else None
            A(f"v_cndmask_b32 v{T+11}, v{T+9}, v{T+10}, vcc")
            A(f"v_mov_b32 v{T+4}, 0")
            A(f"v_cndmask_b32 v{T+5}, v{T+9}, v{T+4}, vcc")
            A(f"v_cmp_eq_u32 vcc, 0x120, v{T+7}")
            A(f"v_cndmask_b32 v{T+11}, v{T+11}, v{T+10}, vcc")
            A(f"v_cndmask_b32 v{T+5}, v{T+5}, v{T+4}, vcc")
            A(f"v_cmp_lt_u32 vcc, 0x120, v{T+7}")
            A(f"v_cndmask_b32 v{T+11}, v{T+11}, v{T+4}, vcc")
            A(f"v_cndmask_b32 v{T+5}, v{T+5}, v{T+4}, vcc")
            A(f"v_mul_f32 v{T+12+2*q}, v{T+12+2*q}, v{T+11}")
            A(f"v_mul_f32 v{T+13+2*q}, v{T+13+2*q}, v{T+5}")
        for p in range(4):
            A(f"v_cvt_pk_bf16_f32 v{T+28+p}, v{T+12+2*p}, v{T+13+2*p}")
        A("s_lshl_b32 s3, s3, 10")
        A(f"v_add_u32 v{T+9}, s3, v{T+20}")
        A(f"ds_write_b128 v{T+9}, {v(T+28,4)}")
    A.label(f"L{tag}_gend")
    for r in range(32): A(f"v_mov_b32 v{ACC+r}, 0")
    A("s_waitcnt lgkmcnt(0)")
    A("s_barrier")
    A(f"v_add_u32 v{T+22}, {37*1024}, v{T+20}")
    for ks in range(37):
        A(f"ds_read_b128 {v(FC+8*(ks&1),4)}, v{T+20} offset:{ks*1024}")
        A(f"ds_read_b128 {v(FC+8*(ks&1)+4,4)}, v{T+22} offset:{ks*1024}")
        if ks > 0:
            p = (ks-1)&1
            A(f"s_waitcnt vmcnt({36-(ks-1)}) lgkmcnt(2)")
            for c in range(2):
                A(f"{MFMA} {v(ACC+16*c,16)}, {v(FC+8*p+4*c,4)}, {v(FD+4*(ks-1),4)}, {v(ACC+16*c,16)}")
    A("s_waitcnt vmcnt(0) lgkmcnt(0)")
    for c in range(2):
        A(f"{MFMA} {v(ACC+16*c,16)}, {v(FC+4*c,4)}, {v(FD+4*36,4)}, {v(ACC+16*c,16)}")
    A("s_lshl_b32 s3, s27, 5")
    A(f"v_add_u32 v{T+3}, s3, v{T+1}")
    A("s_movk_i32 s4, 2304")
    A(f"v_mul_lo_u32 v{T+3}, v{T+3}, s4")
    A(f"v_lshl_add_u32 v{T+3}, v{T+2}, 3, v{T+3}")
    A("s_lshl_b32 s3, s26, 7"); A("s_add_u32 s3, s3, 1152")
    for c in range(2):
        for p in range(8):
            A(f"v_cvt_pk_bf16_f32 v{T+12+p}, v{ACC+16*c+2*p}, v{ACC+16*c+2*p+1}")
        for b in range(4):
            A(f"buffer_store_dwordx2 {v(T+12+2*b,2)}, v{T+3}, s[12:15], s3 offen offset:{64*c+16*b}")
    A("s_endpgm")

def body_s2(A):
    C32, S32, N32 = 0, 8, 16
    C64, S64 = 24, 56
    D1 = 88
    D2 = 120
    ACC = 168
    T = 232
    A("s_load_dwordx4 s[40:43], s[0:1], 56")
    A("s_load_dwordx2 s[46:47], s[0:1], 88")
    A("v_lshrrev_b32 v1, 6, v0")
    A("v_readfirstlane_b32 s24, v1")
    A("s_waitcnt lgkmcnt(0)")
    A("s_lshl_b32 s26, s2, 3")
    A("s_add_u32 s25, s26, s24")
    srd(A, 8, 46, 576*4096, WS_X1)
    srd(A, 12, 46, 64*37*1024, WS_Y)
    srd(A, 16, 40, 2048*289*2)
    srd(A, 20, 42, 2048*289*2)
    A(f"v_and_b32 v{T}, 63, v0")
    A(f"v_and_b32 v{T+1}, 31, v0")
    A(f"v_bfe_u32 v{T+2}, v0, 5, 1")
    A(f"v_lshrrev_b32 v{T+4}, 3, v{T}")
    A("s_lshl_b32 s3, s24, 8")
    A(f"v_add_u32 v{T+4}, s3, v{T+4}")
    A(f"v_mul_u32_u24 v{T+5}, 578, v{T+4}")
    A(f"v_and_b32 v{T+6}, 7, v{T}")
    A(f"v_add_u32 v{T+7}, s26, v{T+6}")
    A(f"v_lshl_add_u32 v{T+5}, v{T+7}, 1, v{T+5}")
    for it in range(32):
        A(f"s_mov_b32 s3, {it*8*578}")
        A(f"buffer_load_ushort v{D1+it}, v{T+5}, s[16:19], s3 offen")
        A(f"buffer_load_ushort v{D2+it}, v{T+5}, s[20:23], s3 offen")
    A(f"v_lshlrev_b32 v{T+5}, 12, v{T+6}")
    A(f"v_lshl_add_u32 v{T+5}, v{T+4}, 1, v{T+5}")
    A("s_waitcnt vmcnt(0)")
    for it in range(32):
        A(f"ds_write_b16 v{T+5}, v{D1+it} offset:{it*16}")
        A(f"ds_write_b16 v{T+5}, v{D2+it} offset:{32768+it*16}")
    A("s_lshr_b32 s3, s25, 3"); A("s_lshl_b32 s3, s3, 10")
    A("s_bfe_u32 s4, s25, 0x10002"); A("s_lshl_b32 s4, s4, 9"); A("s_add_u32 s3, s3, s4")
    A("s_and_b32 s4, s25, 3"); A("s_lshl_b32 s4, s4, 2"); A("s_add_u32 s3, s3, s4")
    A(f"v_mul_u32_u24 v{T+3}, {4*74*1024}, v{T+2}")
    A(f"v_lshl_add_u32 v{T+3}, v{T+1}, 4, v{T+3}")
    A(f"v_add_u32 v{T+3}, s3, v{T+3}")
    A("s_waitcnt lgkmcnt(0)")
    A("s_barrier")
    A("s_cmp_lt_u32 s25, 289")
    A("s_cbranch_scc1 Ls2_go")
    A(f"v_mov_b32 v{T+4}, 0")
    for nt in range(2):
        for r in range(16):
            A(f"s_mov_b32 s3, {((r&3)+8*(r>>2))*74*1024 + nt*37888}")
            A(f"buffer_store_dword v{T+4}, v{T+3}, s[12:15], s3 offen")
    A("s_endpgm")
    A.label("Ls2_go")
    A(f"v_lshlrev_b32 v{T+4}, 4, v{T}")
    A("s_lshl_b32 s3, s25, 12")
    for k in range(4):
        A(f"buffer_load_dwordx4 {v(D1+4*k,4)}, v{T+4}, s[8:11], s3 offen offset:{k*1024}")
    for k in range(16): A(f"v_mov_b32 v{D1+16+k}, 0")
    A("s_cmp_eq_u32 s25, 0"); A("s_cbranch_scc1 Ls2_noim")
    A("s_cmp_eq_u32 s25, 288"); A("s_cbranch_scc1 Ls2_noim")
    A(f"s_add_u32 s3, s3, {288*4096}")
    for k in range(4):
        A(f"buffer_load_dwordx4 {v(D1+16+4*k,4)}, v{T+4}, s[8:11], s3 offen offset:{k*1024}")
    A.label("Ls2_noim")
    def gen(dstc, dsts, dstn, a_reg, tp, N):
        for jj in range(8):
            b0 = 16*tp + 8*(jj>>2) + (jj&3)
            A(f"v_lshl_add_u32 v{T+5}, v{T+2}, 2, {b0}")
            A(f"v_mul_u32_u24 v{T+5}, v{T+5}, v{a_reg}")
            A(f"v_and_b32 v{T+5}, {N-1}, v{T+5}")
            A(f"v_cvt_f32_u32 v{T+5}, v{T+5}")
            A(f"v_mul_f32 v{T+5}, {hex(f2u(1.0/N))}, v{T+5}")
            A(f"v_cos_f32 v{T+8+jj}, v{T+5}")
            A(f"v_sin_f32 v{T+16+jj}, v{T+5}")
        for p in range(4):
            A(f"v_cvt_pk_bf16_f32 v{dstc+p}, v{T+8+2*p}, v{T+9+2*p}")
            A(f"v_cvt_pk_bf16_f32 v{dsts+p}, v{T+16+2*p}, v{T+17+2*p}")
            if dstn is not None:
                A(f"v_xor_b32 v{dstn+p}, 0x80008000, v{dsts+p}")
    for tp in range(2): gen(C32+4*tp, S32+4*tp, N32+4*tp, T+1, tp, 32)
    A(f"v_add_u32 v{T+6}, 32, v{T+1}")
    for tl in range(2):
        for tp in range(4):
            gen(C64+16*tl+4*tp, S64+16*tl+4*tp, None, T+1 if tl == 0 else T+6, tp, 64)
    aR = lambda i: ACC + 16*i
    aI = lambda i: ACC + 32 + 16*i
    A("s_waitcnt vmcnt(0)")
    for mt in range(2):
        for t in range(2):
            c = "0" if t == 0 else v(aR(mt),16)
            A(f"{MFMA} {v(aR(mt),16)}, {v(D1+8*mt+4*t,4)}, {v(C32+4*t,4)}, {c}")
            c = "0" if t == 0 else v(aI(mt),16)
            A(f"{MFMA} {v(aI(mt),16)}, {v(D1+16+8*mt+4*t,4)}, {v(C32+4*t,4)}, {c}")
        for t in range(2):
            A(f"{MFMA} {v(aR(mt),16)}, {v(D1+16+8*mt+4*t,4)}, {v(S32+4*t,4)}, {v(aR(mt),16)}")
            A(f"{MFMA} {v(aI(mt),16)}, {v(D1+8*mt+4*t,4)}, {v(N32+4*t,4)}, {v(aI(mt),16)}")
    def twiddle(sign, lane_a, rowbase_fn):
        for i in range(2):
            for r in range(16):
                b0 = rowbase_fn(i, r)
                la = lane_a(i)
                t5, t7, t8, t9, t10 = T+5, T+7+4*(r&1), T+8+4*(r&1), T+9+4*(r&1), T+10+4*(r&1)
                A(f"v_lshl_add_u32 v{t5}, v{T+2}, 2, {b0}")
                A(f"v_mul_u32_u24 v{t5}, v{t5}, v{la}")
                A(f"v_cvt_f32_u32 v{t5}, v{t5}")
                A(f"v_mul_f32 v{t5}, {hex(f2u(1.0/2048))}, v{t5}")
                A(f"v_cos_f32 v{t7}, v{t5}")
                A(f"v_sin_f32 v{t8}, v{t5}")
                xr, xi = aR(i)+r, aI(i)+r
                A(f"v_mul_f32 v{t9}, v{xr}, v{t7}")
                A(f"v_mul_f32 v{t10}, v{xi}, v{t7}")
                if sign < 0:
                    A(f"v_fma_f32 v{t9}, v{xi}, v{t8}, v{t9}")
                    A(f"v_fma_f32 v{xi}, -v{xr}, v{t8}, v{t10}")
                else:
                    A(f"v_fma_f32 v{t9}, -v{xi}, v{t8}, v{t9}")
                    A(f"v_fma_f32 v{xi}, v{xr}, v{t8}, v{t10}")
                A(f"v_mov_b32 v{xr}, v{t9}")
    def pack(neg):
        for i in range(2):
            for p in range(8):
                A(f"v_cvt_pk_bf16_f32 v{D2+8*i+p}, v{aR(i)+2*p}, v{aR(i)+2*p+1}")
                A(f"v_cvt_pk_bf16_f32 v{D2+16+8*i+p}, v{aI(i)+2*p}, v{aI(i)+2*p+1}")
                src = D2+8*i+p if neg == "r" else D2+16+8*i+p
                A(f"v_xor_b32 v{D2+32+8*i+p}, 0x80008000, v{src}")
    twiddle(-1, lambda i: T+1, lambda i, r: 32*i + (r&3) + 8*(r>>2))
    pack("r")
    A(f"v_lshlrev_b32 v{T+4}, 8, v{T+2}")
    A(f"v_lshl_add_u32 v{T+4}, v{T+1}, 1, v{T+4}")
    A("s_lshl_b32 s3, s24, 12")
    A(f"v_add_u32 v{T+4}, s3, v{T+4}")
    for i in range(2):
        for r in range(16):
            A(f"ds_read_u16 v{D1+16*i+r}, v{T+4} offset:{(32*i+(r&3)+8*(r>>2))*64}")
    for m2 in range(2):
        for tp in range(4):
            c = "0" if tp == 0 else v(aR(m2),16)
            A(f"{MFMA} {v(aR(m2),16)}, {v(C64+16*m2+4*tp,4)}, {v(D2+4*tp,4)}, {c}")
            c = "0" if tp == 0 else v(aI(m2),16)
            A(f"{MFMA} {v(aI(m2),16)}, {v(C64+16*m2+4*tp,4)}, {v(D2+16+4*tp,4)}, {c}")
        for tp in range(4):
            A(f"{MFMA} {v(aR(m2),16)}, {v(S64+16*m2+4*tp,4)}, {v(D2+16+4*tp,4)}, {v(aR(m2),16)}")
            A(f"{MFMA} {v(aI(m2),16)}, {v(S64+16*m2+4*tp,4)}, {v(D2+32+4*tp,4)}, {v(aI(m2),16)}")
    for i in range(2):
        for r in range(16):
            A(f"ds_read_u16 v{D2+16*i+r}, v{T+4} offset:{32768+(32*i+(r&3)+8*(r>>2))*64}")
    A("s_waitcnt lgkmcnt(0)")
    for i in range(2):
        for r in range(16):
            xr, xi = aR(i)+r, aI(i)+r
            t7, t8, t9, t10 = T+7+4*(r&1), T+8+4*(r&1), T+9+4*(r&1), T+10+4*(r&1)
            A(f"v_lshlrev_b32 v{t7}, 16, v{D1+16*i+r}")
            A(f"v_lshlrev_b32 v{t8}, 16, v{D2+16*i+r}")
            A(f"v_mul_f32 v{t9}, v{xr}, v{t7}")
            A(f"v_mul_f32 v{t10}, v{xi}, v{t7}")
            A(f"v_fma_f32 v{t9}, -v{xi}, v{t8}, v{t9}")
            A(f"v_fma_f32 v{xi}, v{xr}, v{t8}, v{t10}")
            A(f"v_mov_b32 v{xr}, v{t9}")
    pack("i")
    for nt in range(2):
        for tp in range(4):
            c = "0" if tp == 0 else v(aR(nt),16)
            A(f"{MFMA} {v(aR(nt),16)}, {v(D2+4*tp,4)}, {v(C64+16*nt+4*tp,4)}, {c}")
            c = "0" if tp == 0 else v(aI(nt),16)
            A(f"{MFMA} {v(aI(nt),16)}, {v(D2+16+4*tp,4)}, {v(C64+16*nt+4*tp,4)}, {c}")
        for tp in range(4):
            A(f"{MFMA} {v(aR(nt),16)}, {v(D2+32+4*tp,4)}, {v(S64+16*nt+4*tp,4)}, {v(aR(nt),16)}")
            A(f"{MFMA} {v(aI(nt),16)}, {v(D2+4*tp,4)}, {v(S64+16*nt+4*tp,4)}, {v(aI(nt),16)}")
    twiddle(+1, lambda i: T+1 if i == 0 else T+6, lambda i, r: (r&3) + 8*(r>>2))
    pack("i")
    for nt in range(2):
        for t in range(2):
            c = "0" if t == 0 else v(aR(nt),16)
            A(f"{MFMA} {v(aR(nt),16)}, {v(C32+4*t,4)}, {v(D2+8*nt+4*t,4)}, {c}")
            c = "0" if t == 0 else v(aI(nt),16)
            A(f"{MFMA} {v(aI(nt),16)}, {v(C32+4*t,4)}, {v(D2+16+8*nt+4*t,4)}, {c}")
        for t in range(2):
            A(f"{MFMA} {v(aR(nt),16)}, {v(N32+4*t,4)}, {v(D2+16+8*nt+4*t,4)}, {v(aR(nt),16)}")
            A(f"{MFMA} {v(aI(nt),16)}, {v(S32+4*t,4)}, {v(D2+8*nt+4*t,4)}, {v(aI(nt),16)}")
    for nt in range(2):
        for r in range(16):
            A(f"v_cvt_pk_bf16_f32 v{D1+16*nt+r}, v{aR(nt)+r}, v{aI(nt)+r}")
            A(f"s_mov_b32 s3, {((r&3)+8*(r>>2))*74*1024 + nt*37888}")
            A(f"buffer_store_dword v{D1+16*nt+r}, v{T+3}, s[12:15], s3 offen")
    A("s_endpgm")

def wrap(body, n, lab):
    def k(A):
        A(f"s_cmp_ge_u32 s2, {n}")
        A(f"s_cbranch_scc1 {lab}")
        body(A)
        A.label(lab)
        A("s_endpgm")
    return k
kernel_s1 = wrap(body_s1, 72, "Ls1_exit")
kernel_s2 = wrap(body_s2, 37, "Ls2_exit")
kernel_s3 = wrap(body_s3, 72, "Ls3_exit")
```

```python
from gen_common import *
import os
EXP=os.environ.get('EXP','')

def gemm_variant2(A, tag, BN, nk, ld_act, swap, NST, scale=None):
    WM = 4 if BN == 256 else 2
    WN = 2
    RB = BN * 2
    ABYTES = 16384
    WBYTES = 32 * RB
    SS = ABYTES + WBYTES
    ACC = 0
    nacc = WM * WN * 16
    FR = nacc
    fsz = WM*4 + WN*4
    AB = FR + 2*fsz
    AD = AB + 4
    VO = AD + 4
    T = VO + 4
    def acc(a, b): return ACC + (a*WN + b)*16
    def fa(st, a): return FR + st*fsz + a*4
    def fw(st, b): return FR + st*fsz + WM*4 + b*4
    nwi = 2 if BN == 256 else 1
    ndma = 2 + nwi

    A(f"v_and_b32 v{T}, 63, v0")
    A(f"v_and_b32 v{T+1}, 31, v0")
    A(f"v_bfe_u32 v{T+2}, v0, 5, 1")
    if BN == 256:
        A("s_and_b32 s23, s22, 1"); A("s_lshr_b32 s24, s22, 1")
    else:
        A("s_and_b32 s23, s22, 3"); A("s_lshr_b32 s24, s22, 2")
    A(f"s_mul_i32 s25, s23, {WM*32*64}")
    A(f"v_lshlrev_b32 v{T+3}, 6, v{T+1}")
    A(f"v_add_u32 v{T+3}, s25, v{T+3}")
    A(f"v_bfe_u32 v{T+4}, v0, 2, 2")
    for ks in range(2):
        A(f"v_or_b32 v{T+5}, {2*ks}, v{T+2}")
        A(f"v_xor_b32 v{T+5}, v{T+5}, v{T+4}")
        A(f"v_lshl_add_u32 v{AB+ks}, v{T+5}, 4, v{T+3}")
    A(f"v_bfe_u32 v{T+5}, v0, 2, 2")
    A(f"v_and_b32 v{T+6}, 3, v0")
    A(f"v_bfe_u32 v{T+7}, v0, 4, 1")
    A(f"v_lshl_add_u32 v{T+8}, v{T+2}, 3, v{T+5}")
    A(f"v_mul_u32_u24 v{T+8}, {RB}, v{T+8}")
    A(f"v_add_u32 v{T+8}, {ABYTES}, v{T+8}")
    A(f"v_and_b32 v{T+9}, 1, v{T+6}")
    A(f"v_lshl_add_u32 v{T+8}, v{T+9}, 3, v{T+8}")
    A(f"v_lshrrev_b32 v{T+9}, 1, v{T+6}")
    A(f"v_lshl_add_u32 v{T+9}, v{T+7}, 1, v{T+9}")
    for b in range(WN):
        A(f"s_lshl_b32 s25, s24, 1")
        A(f"s_add_u32 s25, s25, {b}")
        A(f"s_lshl_b32 s25, s25, 2")
        A(f"v_add_u32 v{T+10}, s25, v{T+9}")
        A(f"v_lshlrev_b32 v{T+11}, 2, v{T+5}")
        A(f"v_xor_b32 v{T+10}, v{T+10}, v{T+11}")
        A(f"v_lshl_add_u32 v{AB+2+b}, v{T+10}, 4, v{T+8}")
    A(f"v_lshrrev_b32 v{T+5}, 2, v{T}")
    A(f"v_and_b32 v{T+6}, 3, v{T}")
    A(f"v_bfe_u32 v{T+8}, v{T}, 4, 2")
    A(f"v_xor_b32 v{T+8}, v{T+8}, v{T+6}")
    A(f"s_lshl_b32 s25, s22, 5")
    A(f"s_add_u32 s25, s25, s20")
    A(f"s_mov_b32 s26, {ld_act}")
    for i in range(2):
        A(f"v_add_u32 v{T+7}, {i*16}, v{T+5}")
        A(f"v_add_u32 v{T+7}, s25, v{T+7}")
        A(f"v_mul_lo_u32 v{T+7}, v{T+7}, s26")
        A(f"v_lshl_add_u32 v{VO+i}, v{T+8}, 4, v{T+7}")
    A(f"s_lshl_b32 s25, s21, 1")
    if BN == 256:
        A(f"v_lshrrev_b32 v{T+5}, 5, v{T}")
        A(f"v_and_b32 v{T+6}, 31, v{T}")
        for i in range(2):
            A(f"v_add_u32 v{T+7}, {2*i}, v{T+5}")
            A(f"v_lshlrev_b32 v{T+8}, 2, v{T+7}")
            A(f"v_xor_b32 v{T+8}, v{T+8}, v{T+6}")
            A(f"s_lshl_b32 s26, s22, 2")
            A(f"v_add_u32 v{T+7}, s26, v{T+7}")
            A(f"v_lshlrev_b32 v{T+7}, 13, v{T+7}")
            A(f"v_lshl_add_u32 v{T+7}, v{T+8}, 4, v{T+7}")
            A(f"v_add_u32 v{VO+2+i}, s25, v{T+7}")
    else:
        A(f"v_lshrrev_b32 v{T+5}, 4, v{T}")
        A(f"v_and_b32 v{T+6}, 15, v{T}")
        A(f"v_lshlrev_b32 v{T+8}, 2, v{T+5}")
        A(f"v_xor_b32 v{T+8}, v{T+8}, v{T+6}")
        A(f"s_lshl_b32 s26, s22, 2")
        A(f"v_add_u32 v{T+7}, s26, v{T+5}")
        A(f"v_lshlrev_b32 v{T+7}, 13, v{T+7}")
        A(f"v_lshl_add_u32 v{T+7}, v{T+8}, 4, v{T+7}")
        A(f"v_add_u32 v{VO+2}, s25, v{T+7}")
    A("s_lshl_b32 s28, s22, 11")
    A(f"s_mul_i32 s29, s22, {4*RB}")
    A(f"s_add_u32 s29, s29, {ABYTES}")
    A("s_mov_b32 s30, 0"); A("s_mov_b32 s31, 0")
    A("s_mov_b32 s32, 0")
    A("s_mov_b32 s33, 0")
    for r in range(nacc): A(f"v_mov_b32 v{ACC+r}, 0")

    def dma_list():
        out = []
        for i in range(2):
            out.append([f"s_add_u32 m0, s28, s32" , f"s_add_u32 m0, m0, {i*1024}" if i else None,
                        f"buffer_load_dwordx4 v{VO+i}, s[8:11], s30 offen lds"])
        for i in range(nwi):
            out.append([f"s_add_u32 m0, s29, s32", f"s_add_u32 m0, m0, {i*1024}" if i else None,
                        f"buffer_load_dwordx4 v{VO+2+i}, s[12:15], s31 offen lds"])
        adv = ["s_add_u32 s30, s30, 64", "s_add_u32 s31, s31, 0x40000",
               f"s_add_u32 s32, s32, {SS}", f"s_cmp_eq_u32 s32, {SS*NST}", "s_cselect_b32 s32, 0, s32"]
        return out, adv
    def emit_dma_all():
        o, adv = dma_list()
        for g in o:
            for l in g:
                if l: A(l)
        for l in adv: A(l)
    def set_addr():
        for k in range(4): A(f"v_add_u32 v{AD+k}, s33, v{AB+k}")
        A(f"s_add_u32 s33, s33, {SS}"); A(f"s_cmp_eq_u32 s33, {SS*NST}"); A("s_cselect_b32 s33, 0, s33")
    def reads(st, ks):
        out = []
        for a in range(WM):
            out.append(f"ds_read_b128 {v(fa(st,a),4)}, v{AD+ks} offset:{a*2048}")
        for b in range(WN):
            for e in range(2):
                out.append(f"ds_read_b64_tr_b16 {v(fw(st,b)+2*e,2)}, v{AD+2+b} offset:{(16*ks+4*e)*RB}")
        return out
    nrd = WM + 2*WN
    def mfmas(st):
        out = []
        for a in range(WM):
            for b in range(WN):
                if swap: out.append(f"{MFMA} {v(acc(a,b),16)}, {v(fa(st,a),4)}, {v(fw(st,b),4)}, {v(acc(a,b),16)}")
                else:    out.append(f"{MFMA} {v(acc(a,b),16)}, {v(fw(st,b),4)}, {v(fa(st,a),4)}, {v(acc(a,b),16)}")
        if 'nomfma' in EXP: out = out[:1]
        return out
    def interleave(ms, others):
        n = len(ms); k = len(others); j = 0
        for i, m in enumerate(ms):
            A(m)
            tgt = (k * (i+1)) // n
            while j < tgt:
                if others[j]: A(others[j])
                j += 1

    def stamp(i):
        if 'stamp' in EXP:
            A(f"s_memtime s[{60+2*i}:{61+2*i}]")
            A(f"s_memrealtime s[{70+2*i}:{71+2*i}]")
            A("s_waitcnt lgkmcnt(0)")
    stamp(0)
    for st in range(NST-1): emit_dma_all()
    A(f"s_waitcnt vmcnt({ndma*(NST-2)})")
    A("s_barrier")
    stamp(1)
    set_addr()
    for l in reads(0, 0): A(l)
    def body(i_from_end):
        steady = i_from_end >= NST - 1
        rd = reads(1, 1)
        for l in rd: A(l)
        A(f"s_waitcnt lgkmcnt({nrd})")
        interleave(mfmas(0), [])
        if i_from_end > 0:
            nout = min(NST-2, i_from_end) - 1
            A(f"s_waitcnt vmcnt({ndma*nout}) lgkmcnt(0)")
            A("s_barrier")
            set_addr()
            oth = reads(0, 0)
            if steady:
                o, adv = dma_list()
                for g in o: oth += [l for l in g if l and not ('nodma' in EXP and 'buffer_load' in l)]
                oth += adv
            interleave(mfmas(1), oth)
        else:
            A("s_waitcnt lgkmcnt(0)")
            interleave(mfmas(1), [])
    nsteady = nk - (NST - 1)
    A(f"s_mov_b32 s27, {nsteady}")
    A.label(f"L{tag}_loop")
    body(NST)
    A("s_sub_u32 s27, s27, 1")
    A("s_cmp_lg_u32 s27, 0")
    A(f"s_cbranch_scc1 L{tag}_loop")
    for r in range(NST-2, -1, -1): body(r)

    stamp(2)
    A(f"v_lshlrev_b32 v{T}, 4, v{T}")
    PK = FR
    for a in range(WM):
        for b in range(WN):
            A(f"s_mul_i32 s25, s23, {WM}")
            A(f"s_add_u32 s25, s25, {a}")
            A(f"s_lshr_b32 s26, s20, 5")
            A(f"s_add_u32 s25, s25, s26")
            A(f"s_lshl_b32 s26, s24, 1")
            A(f"s_add_u32 s26, s26, {b}")
            A(f"s_lshr_b32 s27, s21, 5")
            A(f"s_add_u32 s26, s26, s27")
            A(f"s_lshr_b32 s27, s26, 2")
            A(f"s_lshl_b32 s27, s27, 6")
            A(f"s_add_u32 s27, s27, s25")
            A(f"s_lshl_b32 s27, s27, 13")
            A(f"s_and_b32 s26, s26, 3")
            A(f"s_lshl_b32 s26, s26, 11")
            A(f"s_add_u32 s27, s27, s26")
            for t in range(2):
                base = PK + ((a*WN+b)*2 + t) % 4 * 4
                if scale:
                    for j in range(8): A(f"v_mul_f32 v{acc(a,b)+8*t+j}, {scale}, v{acc(a,b)+8*t+j}")
                for j in range(4):
                    A(f"v_cvt_pk_bf16_f32 v{base+j}, v{acc(a,b)+8*t+2*j}, v{acc(a,b)+8*t+2*j+1}")
                A(f"buffer_store_dwordx4 {v(base,4)}, v{T}, s[16:19], s27 offen offset:{t*1024}")
    if 'stamp' in EXP:
        A("s_waitcnt vmcnt(0)")
        stamp(3)
        A("s_cmp_lg_u32 s22, 0")
        A(f"s_cbranch_scc1 L{tag}_nost")
        A("s_add_u32 s48, s46, 0x8000000"); A("s_addc_u32 s49, s47, 0"); A("s_mov_b32 s50, 0x100000"); A("s_mov_b32 s51, 0x00020000")
        for i in range(4):
            A(f"v_mov_b32 v{i}, s{60+2*i}")
            A(f"v_mov_b32 v{4+i}, s{70+2*i}")
        A("s_lshl_b32 s52, s2, 5")
        A("v_mov_b32 v10, 0")
        A("buffer_store_dwordx4 v[0:3], v10, s[48:51], s52 offen")
        A("buffer_store_dwordx4 v[4:7], v10, s[48:51], s52 offen offset:16")
        A.label(f"L{tag}_nost")
    A("s_endpgm")

def kernel_proj(A):
    A("s_load_dwordx4 s[36:39], s[0:1], 0")
    A("s_load_dwordx4 s[40:43], s[0:1], 16")
    A("s_load_dwordx2 s[44:45], s[0:1], 32")
    A("s_load_dwordx2 s[46:47], s[0:1], 88")
    A("v_lshrrev_b32 v1, 6, v0")
    A("v_readfirstlane_b32 s22, v1")
    A("s_cmp_ge_u32 s2, 512")
    A("s_cbranch_scc1 Lproj_exit")
    A("s_waitcnt lgkmcnt(0)")
    A("s_and_b32 s3, s2, 255")
    A("s_and_b32 s4, s3, 7")
    A("s_lshr_b32 s5, s3, 3")
    A("s_and_b32 s6, s5, 7")
    A("s_lshr_b32 s5, s5, 3")
    A("s_lshl_b32 s4, s4, 2")
    A("s_add_u32 s7, s4, s5")
    A("s_lshl_b32 s20, s6, 8")
    A("s_cmp_ge_u32 s2, 256")
    A("s_cbranch_scc1 Lproj_q")
    srd(A, 8, 38, 2048*1024)
    A("s_cmp_ge_u32 s7, 16")
    A("s_cbranch_scc1 Lproj_v")
    srd(A, 12, 42, 512*8192)
    srd(A, 16, 46, 0x1000000, WS_K)
    A("s_lshl_b32 s21, s7, 8")
    gemm_variant2(A, "k", 256, 16, 1024, False, 5)
    A.label("Lproj_v")
    srd(A, 12, 44, 512*8192)
    srd(A, 16, 46, 0x1000000, WS_V)
    A("s_sub_u32 s7, s7, 16")
    A("s_lshl_b32 s21, s7, 8")
    gemm_variant2(A, "v", 256, 16, 1024, True, 5)
    A.label("Lproj_q")
    srd(A, 8, 36, 2048*1152)
    srd(A, 12, 40, 576*8192)
    srd(A, 16, 46, 0x1000000, WS_Q)
    A("s_lshl_b32 s21, s7, 7")
    gemm_variant2(A, "q", 128, 18, 1152, False, 6, scale=os.environ.get("QSCALE", "0x3e0293ee") or None)
    A.label("Lproj_exit")
    A("s_endpgm")
```

```python
import sys, os
from gen_common import *
from gen_proj2 import kernel_proj
if os.environ.get('ATTN','2') == '1':
    from gen_attn import kernel_attn
elif os.environ.get('ATTN') == '2':
    from gen_attn2 import kernel_attn
elif os.environ.get('ATTN') == '4':
    from gen_attn4 import kernel_attn
else:
    from gen_attn3 import kernel_attn
from gen_oproj import kernel_oproj
from gen_fft2 import body_s1, body_s2, body_s3, kernel_s1, kernel_s2, kernel_s3

def merged(body, n, main, lab):
    def k(A):
        A(f"s_cmp_ge_u32 s2, {n}")
        A(f"s_cbranch_scc1 {lab}")
        body(A)
        A.label(lab)
        A(f"s_sub_u32 s2, s2, {n}")
        main(A)
    return k
if os.environ.get('SPLIT'):
    kernels = [("proj_kernel", kernel_proj, 512, 512, 163840, 256),
           ("attn_kernel", kernel_attn, 256, 512, 135168, 256),
           ("oproj_kernel", kernel_oproj, 192, 512, 147456, 256),
           ("s1_kernel", kernel_s1, 72, 512, 65536+73728, 256),
           ("s2_kernel", kernel_s2, 37, 512, 65536, 256),
           ("s3_kernel", kernel_s3, 72, 512, 75776, 256)]
else:
    kernels = [("l1_kernel", merged(body_s1, 72, kernel_proj, "Lm1"), 512+72, 512, 163840, 256),
           ("l2_kernel", merged(body_s2, 37, kernel_attn, "Lm2"), 256+37, 512, 135168, 256),
           ("l3_kernel", merged(body_s3, 72, kernel_oproj, "Lm3"), 192+72, 512, 147456, 256)]
emit_file(kernels, sys.argv[1] if len(sys.argv) > 1 else "cdna_kernels/%s.s" % NAME)
```

```python
from gen_common import *
import os
EXP=os.environ.get('EXP','')
def cst(A,i):
    if 'cstamp' in EXP:
        A(f's_memrealtime s[{64+2*i}:{65+2*i}]'); A('s_waitcnt lgkmcnt(0)')
from gen_fft2 import f2u, mod576, body_s1

def body_s2(A, done_label):
    C32, S32, N32 = 0, 8, 16
    C64, S64 = 24, 56
    D1 = 88; D2 = 120; ACC = 168; T = 232
    LW, LC, LTB, LTE = 0, 65536, 65536+22528, 65536+22528+16384
    A("s_lshl_b32 s26, s2, 3")
    A("s_add_u32 s25, s26, s24")
    srd(A, 8, 46, 576*4096, WS_X1)
    srd(A, 12, 46, 64*37*1024, WS_Y)
    srd(A, 16, 40, 2048*289*2)
    srd(A, 20, 42, 2048*289*2)
    A(f"v_and_b32 v{T}, 63, v0")
    A(f"v_and_b32 v{T+1}, 31, v0")
    A(f"v_bfe_u32 v{T+2}, v0, 5, 1")
    A(f"v_lshlrev_b32 v{T+4}, 4, v{T}")
    A("s_lshl_b32 s3, s25, 12")
    for k in range(16): A(f"v_mov_b32 v{D1+16+k}, 0")
    A("s_cmp_ge_u32 s25, 289"); A("s_cbranch_scc1 Ls2_noim")
    for k in range(4):
        A(f"buffer_load_dwordx4 {v(D1+4*k,4)}, v{T+4}, s[8:11], s3 offen offset:{k*1024}")
    A("s_cmp_eq_u32 s25, 0"); A("s_cbranch_scc1 Ls2_noim")
    A("s_cmp_eq_u32 s25, 288"); A("s_cbranch_scc1 Ls2_noim")
    A(f"s_add_u32 s3, s3, {288*4096}")
    for k in range(4):
        A(f"buffer_load_dwordx4 {v(D1+16+4*k,4)}, v{T+4}, s[8:11], s3 offen offset:{k*1024}")
    A.label("Ls2_noim")
    srd(A, 16, 46, 289*8192, WS_WP)
    def genpair(idreg_s):
        pass
    def gen_generic(sid):
        A(f"s_cmp_lt_u32 s{sid}, 2")
        A("s_cselect_b32 s6, 31, 63")
        A(f"s_mov_b32 s7, {f2u(1/64)}")
        A(f"s_cselect_b32 s7, {f2u(1/32)}, s7")
        A(f"s_sub_u32 s3, s{sid}, 2")
        A(f"s_cselect_b32 s3, s{sid}, s3")
        A("s_and_b32 s4, s3, 3")
        A("s_lshr_b32 s5, s3, 2")
        A("s_lshl_b32 s5, s5, 5")
        A(f"v_add_u32 v{T+9}, s5, v{T+1}")
        A("s_lshl_b32 s4, s4, 4")
        for jj in range(8):
            b0 = 8*(jj>>2) + (jj&3)
            A(f"v_lshl_add_u32 v{T+10}, v{T+2}, 2, {b0}")
            A(f"v_add_u32 v{T+10}, s4, v{T+10}")
            A(f"v_mul_u32_u24 v{T+10}, v{T+10}, v{T+9}")
            A(f"v_and_b32 v{T+10}, s6, v{T+10}")
            A(f"v_cvt_f32_u32 v{T+10}, v{T+10}")
            A(f"v_mul_f32 v{T+10}, s7, v{T+10}")
            A(f"v_cos_f32 v{D2+jj}, v{T+10}")
            A(f"v_sin_f32 v{D2+8+jj}, v{T+10}")
        for p in range(4):
            A(f"v_cvt_pk_bf16_f32 v{D2+16+p}, v{D2+2*p}, v{D2+2*p+1}")
            A(f"v_cvt_pk_bf16_f32 v{D2+20+p}, v{D2+8+2*p}, v{D2+8+2*p+1}")
        A(f"s_lshl_b32 s3, s{sid}, 11")
        A(f"s_add_u32 s3, s3, {LC}")
        A(f"v_add_u32 v{T+10}, s3, v{T+4}")
        A(f"ds_write_b128 v{T+10}, {v(D2+16,4)}")
        A(f"ds_write_b128 v{T+10}, {v(D2+20,4)} offset:1024")
    A("s_mov_b32 s27, s24")
    gen_generic(27)
    A("s_cmp_ge_u32 s24, 2"); A("s_cbranch_scc1 Ls2_g2")
    A("s_add_u32 s27, s24, 8")
    gen_generic(27)
    A.label("Ls2_g2")
    A(f"v_add_u32 v{T+6}, 32, v{T+1}")
    for n in range(8):
        A(f"s_lshl_b32 s3, s24, 3"); A(f"s_add_u32 s3, s3, {n}")
        A("s_and_b32 s4, s3, 15")
        A("s_and_b32 s5, s4, 3"); A("s_lshr_b32 s6, s4, 2"); A("s_lshl_b32 s6, s6, 3"); A("s_add_u32 s5, s5, s6")
        A("s_bfe_u32 s6, s3, 0x10004")
        A("s_lshr_b32 s7, s3, 5")
        A("s_lshl_b32 s27, s6, 5")
        A("s_cmp_eq_u32 s7, 0")
        A("s_cselect_b32 s28, s27, 0")
        A("s_cselect_b32 s29, 0, s27")
        A("s_add_u32 s5, s5, s28")
        A(f"v_lshlrev_b32 v{T+9}, 2, v{T+2}")
        A(f"v_add_u32 v{T+9}, s5, v{T+9}")
        A(f"v_add_u32 v{T+10}, s29, v{T+1}")
        A(f"v_mul_u32_u24 v{T+9}, v{T+9}, v{T+10}")
        A(f"v_cvt_f32_u32 v{T+9}, v{T+9}")
        A(f"v_mul_f32 v{T+9}, {hex(f2u(1.0/2048))}, v{T+9}")
        A(f"v_cos_f32 v{T+10}, v{T+9}")
        A(f"v_sin_f32 v{T+11}, v{T+9}")
        A("s_lshl_b32 s3, s3, 9")
        A(f"s_add_u32 s3, s3, {LTB}")
        A(f"v_lshrrev_b32 v{T+9}, 1, v{T+4}")
        A(f"v_add_u32 v{T+9}, s3, v{T+9}")
        A(f"ds_write_b64 v{T+9}, {v(T+10,2)}")
    cst(A,6)
    A("s_waitcnt vmcnt(0)")
    cst(A,7)
    A("s_bfe_u32 s4, s24, 0x10002"); A("s_lshl_b32 s3, s4, 9")
    A("s_and_b32 s4, s24, 3"); A("s_lshl_b32 s4, s4, 2"); A("s_add_u32 s3, s3, s4")
    A(f"v_lshlrev_b32 v{T+3}, 13, v{T+2}")
    A(f"v_lshl_add_u32 v{T+3}, v{T+1}, 4, v{T+3}")
    A(f"v_add_u32 v{T+3}, s3, v{T+3}")
    A("s_waitcnt lgkmcnt(0)")
    A("s_barrier")
    cst(A,8)
    A("s_cmp_lt_u32 s25, 289")
    A("s_cbranch_scc1 Ls2_go")
    for r in range(32): A(f"v_mov_b32 v{D1+r}, 0")
    A("s_branch Ls2_fin")
    A.label("Ls2_go")
    A(f"v_add_u32 v{T+5}, {LC}, v{T+4}")
    for tp in range(2):
        A(f"ds_read_b128 {v(C32+4*tp,4)}, v{T+5} offset:{tp*2048}")
        A(f"ds_read_b128 {v(S32+4*tp,4)}, v{T+5} offset:{tp*2048+1024}")
    for k in range(8):
        A(f"ds_read_b128 {v(C64+4*k,4)}, v{T+5} offset:{(2+k)*2048}")
        A(f"ds_read_b128 {v(S64+4*k,4)}, v{T+5} offset:{(2+k)*2048+1024}")
    A("s_waitcnt lgkmcnt(0)")
    for p in range(8): A(f"v_xor_b32 v{N32+p}, 0x80008000, v{S32+p}")
    aR = lambda i: ACC + 16*i
    aI = lambda i: ACC + 32 + 16*i
    A(f"v_lshrrev_b32 v{T+7}, 1, v{T+4}")
    A(f"v_add_u32 v{T+7}, {LTB}, v{T+7}")
    for mt in range(2):
        for t in range(2):
            c = "0" if t == 0 else v(aR(mt),16)
            A(f"{MFMA} {v(aR(mt),16)}, {v(D1+8*mt+4*t,4)}, {v(C32+4*t,4)}, {c}")
            c = "0" if t == 0 else v(aI(mt),16)
            A(f"{MFMA} {v(aI(mt),16)}, {v(D1+16+8*mt+4*t,4)}, {v(C32+4*t,4)}, {c}")
        for t in range(2):
            A(f"{MFMA} {v(aR(mt),16)}, {v(D1+16+8*mt+4*t,4)}, {v(S32+4*t,4)}, {v(aR(mt),16)}")
            A(f"{MFMA} {v(aI(mt),16)}, {v(D1+8*mt+4*t,4)}, {v(N32+4*t,4)}, {v(aI(mt),16)}")
    def twiddle(sign, ebase):
        for i in range(2):
            for r in range(16):
                A(f"ds_read_b64 {v((D1 if i == 0 else D2)+2*r,2)}, v{T+7} offset:{(ebase+16*i+r)*512}")
        A("s_waitcnt lgkmcnt(0)")
        for i in range(2):
            for r in range(16):
                c_, s_ = (D1 if i == 0 else D2)+2*r, (D1 if i == 0 else D2)+2*r+1
                xr, xi = aR(i)+r, aI(i)+r
                t9, t10 = T+8+2*(r&1), T+9+2*(r&1)
                A(f"v_mul_f32 v{t9}, v{xr}, v{c_}")
                A(f"v_mul_f32 v{t10}, v{xi}, v{c_}")
                if sign < 0:
                    A(f"v_fma_f32 v{t9}, v{xi}, v{s_}, v{t9}")
                    A(f"v_fma_f32 v{xi}, -v{xr}, v{s_}, v{t10}")
                else:
                    A(f"v_fma_f32 v{t9}, -v{xi}, v{s_}, v{t9}")
                    A(f"v_fma_f32 v{xi}, v{xr}, v{s_}, v{t10}")
                A(f"v_mov_b32 v{xr}, v{t9}")
    def pack(neg):
        for i in range(2):
            for p in range(8):
                A(f"v_cvt_pk_bf16_f32 v{D2+8*i+p}, v{aR(i)+2*p}, v{aR(i)+2*p+1}")
                A(f"v_cvt_pk_bf16_f32 v{D2+16+8*i+p}, v{aI(i)+2*p}, v{aI(i)+2*p+1}")
                src = D2+8*i+p if neg == "r" else D2+16+8*i+p
                A(f"v_xor_b32 v{D2+32+8*i+p}, 0x80008000, v{src}")
    twiddle(-1, 0)
    pack("r")
    cst(A,9)
    A("s_lshl_b32 s3, s25, 13")
    A(f"v_lshlrev_b32 v{T+5}, 9, v{T+2}")
    A(f"v_lshl_add_u32 v{T+5}, v{T+1}, 2, v{T+5}")
    A(f"v_add_u32 v{T+6}, 4096, v{T+5}")
    for i in range(2):
        for r in range(16):
            A(f"buffer_load_dword v{D1+16*i+r}, v{T+5 if i == 0 else T+6}, s[16:19], s3 offen offset:{((r&3)+8*(r>>2))*128}")
    for m2 in range(2):
        for tp in range(4):
            c = "0" if tp == 0 else v(aR(m2),16)
            A(f"{MFMA} {v(aR(m2),16)}, {v(C64+16*m2+4*tp,4)}, {v(D2+4*tp,4)}, {c}")
            c = "0" if tp == 0 else v(aI(m2),16)
            A(f"{MFMA} {v(aI(m2),16)}, {v(C64+16*m2+4*tp,4)}, {v(D2+16+4*tp,4)}, {c}")
        for tp in range(4):
            A(f"{MFMA} {v(aR(m2),16)}, {v(S64+16*m2+4*tp,4)}, {v(D2+16+4*tp,4)}, {v(aR(m2),16)}")
            A(f"{MFMA} {v(aI(m2),16)}, {v(S64+16*m2+4*tp,4)}, {v(D2+32+4*tp,4)}, {v(aI(m2),16)}")
    A("s_waitcnt vmcnt(0)")
    for i in range(2):
        for r in range(16):
            xr, xi = aR(i)+r, aI(i)+r
            t7, t8, t9, t10 = T+8+4*(r&1), T+9+4*(r&1), T+10+4*(r&1), T+11+4*(r&1)
            A(f"v_lshlrev_b32 v{t7}, 16, v{D1+16*i+r}")
            A(f"v_and_b32 v{t8}, 0xffff0000, v{D1+16*i+r}")
            A(f"v_mul_f32 v{t9}, v{xr}, v{t7}")
            A(f"v_mul_f32 v{t10}, v{xi}, v{t7}")
            A(f"v_fma_f32 v{t9}, -v{xi}, v{t8}, v{t9}")
            A(f"v_fma_f32 v{xi}, v{xr}, v{t8}, v{t10}")
            A(f"v_mov_b32 v{xr}, v{t9}")
    pack("i")
    for nt in range(2):
        for tp in range(4):
            c = "0" if tp == 0 else v(aR(nt),16)
            A(f"{MFMA} {v(aR(nt),16)}, {v(D2+4*tp,4)}, {v(C64+16*nt+4*tp,4)}, {c}")
            c = "0" if tp == 0 else v(aI(nt),16)
            A(f"{MFMA} {v(aI(nt),16)}, {v(D2+16+4*tp,4)}, {v(C64+16*nt+4*tp,4)}, {c}")
        for tp in range(4):
            A(f"{MFMA} {v(aR(nt),16)}, {v(D2+32+4*tp,4)}, {v(S64+16*nt+4*tp,4)}, {v(aR(nt),16)}")
            A(f"{MFMA} {v(aI(nt),16)}, {v(D2+4*tp,4)}, {v(S64+16*nt+4*tp,4)}, {v(aI(nt),16)}")
    cst(A,10)
    twiddle(+1, 32)
    pack("i")
    cst(A,11)
    for nt in range(2):
        for t in range(2):
            c = "0" if t == 0 else v(aR(nt),16)
            A(f"{MFMA} {v(aR(nt),16)}, {v(C32+4*t,4)}, {v(D2+8*nt+4*t,4)}, {c}")
            c = "0" if t == 0 else v(aI(nt),16)
            A(f"{MFMA} {v(aI(nt),16)}, {v(C32+4*t,4)}, {v(D2+16+8*nt+4*t,4)}, {c}")
        for t in range(2):
            A(f"{MFMA} {v(aR(nt),16)}, {v(N32+4*t,4)}, {v(D2+16+8*nt+4*t,4)}, {v(aR(nt),16)}")
            A(f"{MFMA} {v(aI(nt),16)}, {v(S32+4*t,4)}, {v(D2+8*nt+4*t,4)}, {v(aI(nt),16)}")
    for nt in range(2):
        for r in range(16):
            A(f"v_cvt_pk_bf16_f32 v{D1+16*nt+r}, v{aR(nt)+r}, v{aI(nt)+r}")
    A.label("Ls2_fin")
    A("s_barrier")
    for nt in range(2):
        for r in range(16):
            A(f"ds_write_b32 v{T+3}, v{D1+16*nt+r} offset:{((r&3)+8*(r>>2))*2048 + nt*1024}")
    A("s_waitcnt lgkmcnt(0)")
    A("s_barrier")
    A("s_lshl_b32 s3, s24, 13")
    A(f"v_add_u32 v{T+5}, s3, v{T+4}")
    for k in range(8):
        A(f"ds_read_b128 {v(D2+4*k,4)}, v{T+5} offset:{k*1024}")
    A("s_waitcnt lgkmcnt(0)")
    for k in range(8):
        A(f"s_lshl_b32 s3, s24, 3"); A(f"s_add_u32 s3, s3, {k}"); A("s_mul_i32 s3, s3, 37"); A("s_add_u32 s3, s3, s2"); A("s_lshl_b32 s3, s3, 10")
        A(f"buffer_store_dwordx4 {v(D2+4*k,4)}, v{T+4}, s[12:15], s3 offen sc0 sc1")
    A(f"s_branch {done_label}")

def body_s3(A, wait_code):
    ACC = 0
    FD = 48
    FC = 196
    T = 220
    A("s_and_b32 s25, s2, 7")
    A("s_lshr_b32 s26, s2, 3")
    srd(A, 8, 46, 64*37*1024, WS_Y)
    srd(A, 12, 42, 2048*2304)
    A(f"v_mbcnt_lo_u32_b32 v{T}, -1, 0")
    A(f"v_mbcnt_hi_u32_b32 v{T}, -1, v{T}")
    A(f"v_and_b32 v{T+1}, 31, v{T}")
    A(f"v_bfe_u32 v{T+2}, v{T}, 5, 1")
    A(f"v_lshlrev_b32 v{T+20}, 4, v{T}")
    A("s_mov_b32 s36, %d" % f2u(1.0/576.0)); A("s_movk_i32 s37, 576"); A("s_mov_b32 s38, 7456541")
    A(f"s_mov_b32 s39, {f2u(2.0/(2048*576))}")
    A(f"s_mov_b32 s40, {f2u(-2.0/(2048*576))}")
    A("s_barrier")
    ZC, ZS = T+4, T+8
    RC, RS = T+21, T+22
    for c in range(3):
        A("s_mul_i32 s6, s26, 96"); A(f"s_add_u32 s6, s6, {32*c}")
        A(f"v_add_u32 v{T+3}, s6, v{T+1}")
        A("s_lshl_b32 s6, s24, 3")
        for q in range(4):
            A(f"v_lshl_add_u32 v{T+12}, v{T+2}, 2, {q}")
            A(f"v_add_u32 v{T+12}, s6, v{T+12}")
            A(f"v_mul_u32_u24 v{T+12}, v{T+12}, v{T+3}")
            mod576(A, T+12, T+12, T+13)
            A(f"v_cvt_f32_u32 v{T+12}, v{T+12}")
            A(f"v_mul_f32 v{T+12}, s36, v{T+12}")
            A(f"v_cos_f32 v{ZC+q}, v{T+12}")
            A(f"v_sin_f32 v{ZS+q}, v{T+12}")
        A(f"v_lshlrev_b32 v{T+12}, 6, v{T+3}")
        mod576(A, T+12, T+12, T+13)
        A(f"v_cvt_f32_u32 v{T+12}, v{T+12}")
        A(f"v_mul_f32 v{T+12}, s36, v{T+12}")
        A(f"v_cos_f32 v{RC}, v{T+12}")
        A(f"v_sin_f32 v{RS}, v{T+12}")
        for n in range(5):
            if n == 4:
                A("s_cmp_ge_u32 s24, 5"); A(f"s_cbranch_scc1 Ls3_gn{c}")
            for q in range(4):
                A(f"v_mul_f32 v{T+12+2*q}, s39, v{ZC+q}")
                A(f"v_mul_f32 v{T+13+2*q}, s39, -v{ZS+q}") if False else A(f"v_mul_f32 v{T+13+2*q}, s40, v{ZS+q}")
            if n == 0:
                A("s_cmp_lg_u32 s24, 0"); A(f"s_cbranch_scc1 Ls3_g0{c}")
                A(f"v_cmp_eq_u32 vcc, 0, v{T+2}")
                A(f"v_mul_f32 v{T+23}, 0.5, v{T+12}")
                A(f"v_cndmask_b32 v{T+12}, v{T+12}, v{T+23}, vcc")
                A(f"v_mov_b32 v{T+23}, 0")
                A(f"v_cndmask_b32 v{T+13}, v{T+13}, v{T+23}, vcc")
                A.label(f"Ls3_g0{c}")
            if n == 4:
                A("s_cmp_lg_u32 s24, 4"); A(f"s_cbranch_scc1 Ls3_g4{c}")
                A(f"v_cmp_eq_u32 vcc, 0, v{T+2}")
                A(f"v_mul_f32 v{T+23}, 0.5, v{T+12}")
                A(f"v_mov_b32 v{T+24}, 0")
                A(f"v_cndmask_b32 v{T+12}, v{T+24}, v{T+23}, vcc")
                for z in range(13, 20): A(f"v_mov_b32 v{T+z}, 0")
                A.label(f"Ls3_g4{c}")
            for p in range(4):
                A(f"v_cvt_pk_bf16_f32 v{T+28+p}, v{T+12+2*p}, v{T+13+2*p}")
            A(f"s_lshl_b32 s3, s24, 10")
            A(f"s_add_u32 s3, s3, {(c*37+8*n)*1024}")
            A(f"v_add_u32 v{T+23}, s3, v{T+20}")
            A(f"ds_write_b128 v{T+23}, {v(T+28,4)}")
            if n < 4:
                for q in range(4):
                    A(f"v_mul_f32 v{T+12+2*q}, v{ZC+q}, v{RC}")
                    A(f"v_mul_f32 v{T+13+2*q}, v{ZS+q}, v{RC}")
                for q in range(4):
                    A(f"v_fma_f32 v{T+12+2*q}, -v{ZS+q}, v{RS}, v{T+12+2*q}")
                    A(f"v_fma_f32 v{T+13+2*q}, v{ZC+q}, v{RS}, v{T+13+2*q}")
                for q in range(4):
                    A(f"v_mov_b32 v{ZC+q}, v{T+12+2*q}")
                    A(f"v_mov_b32 v{ZS+q}, v{T+13+2*q}")
        A.label(f"Ls3_gn{c}")
    A.label("Ls3_gend")
    for r in range(48): A(f"v_mov_b32 v{ACC+r}, 0")
    A("s_waitcnt lgkmcnt(0)")
    cst(A,3)
    wait_code(A, T+3)
    cst(A,4)
    A("s_lshl_b32 s27, s25, 3"); A("s_add_u32 s27, s27, s24")
    A(f"s_mul_i32 s3, s27, {37*1024}")
    A(f"v_add_u32 v{T+21}, s3, v{T+20}")
    for ks in range(37):
        if ks % 4 == 0 and ks: A(f"v_add_u32 v{T+21}, 4096, v{T+21}")
        A(f"buffer_load_dwordx4 {v(FD+4*ks,4)}, v{T+21}, s[8:11], 0 offen offset:{(ks%4)*1024} sc0 sc1")
    A(f"v_add_u32 v{T+22}, {37*1024}, v{T+20}")
    A(f"v_add_u32 v{T+23}, {74*1024}, v{T+20}")
    for ks in range(37):
        for c in range(3):
            A(f"ds_read_b128 {v(FC+12*(ks&1)+4*c,4)}, v{(T+20, T+22, T+23)[c]} offset:{ks*1024}")
        if ks > 0:
            p = (ks-1)&1
            A(f"s_waitcnt vmcnt({36-(ks-1)}) lgkmcnt(3)")
            for c in range(3):
                A(f"{MFMA} {v(ACC+16*c,16)}, {v(FC+12*p+4*c,4)}, {v(FD+4*(ks-1),4)}, {v(ACC+16*c,16)}")
    A("s_waitcnt vmcnt(0) lgkmcnt(0)")
    for c in range(3):
        A(f"{MFMA} {v(ACC+16*c,16)}, {v(FC+4*c,4)}, {v(FD+4*36,4)}, {v(ACC+16*c,16)}")
    A("s_lshl_b32 s3, s27, 5")
    A(f"v_add_u32 v{T+3}, s3, v{T+1}")
    A("s_movk_i32 s4, 2304")
    A(f"v_mul_lo_u32 v{T+3}, v{T+3}, s4")
    A(f"v_lshl_add_u32 v{T+3}, v{T+2}, 3, v{T+3}")
    A("s_mul_i32 s3, s26, 192"); A("s_add_u32 s3, s3, 1152")
    for c in range(3):
        for p in range(8):
            A(f"v_cvt_pk_bf16_f32 v{T+12+p}, v{ACC+16*c+2*p}, v{ACC+16*c+2*p+1}")
        for b in range(4):
            A(f"buffer_store_dwordx2 {v(T+12+2*b,2)}, v{T+3}, s[12:15], s3 offen offset:{64*c+16*b}")
    if 'cstamp' in EXP:
        A("s_waitcnt vmcnt(0)")
        cst(A,5)
        A("s_add_u32 s48, s46, 0x8000000"); A("s_addc_u32 s49, s47, 0"); A("s_mov_b32 s50, 0x100000"); A("s_mov_b32 s51, 0x00020000")
        for i in range(12): A(f"v_mov_b32 v{i}, s{64+2*i}")
        A("s_lshl_b32 s52, s2, 3"); A("s_add_u32 s52, s52, s24"); A("s_lshl_b32 s52, s52, 6")
        A("v_mov_b32 v20, 0")
        A("buffer_store_dwordx4 v[0:3], v20, s[48:51], s52 offen")
        A("buffer_store_dwordx4 v[4:7], v20, s[48:51], s52 offen offset:16")
        A("buffer_store_dwordx4 v[8:11], v20, s[48:51], s52 offen offset:32")
    A("s_endpgm")

def chain23(A):
    A("s_load_dwordx4 s[40:43], s[0:1], 56")
    A("s_load_dwordx2 s[46:47], s[0:1], 88")
    A("s_load_dwordx2 s[56:57], s[0:1], 80")
    A("s_load_dwordx2 s[58:59], s[0:1], 72")
    A("v_lshrrev_b32 v1, 6, v0")
    A("v_readfirstlane_b32 s24, v1")
    A("s_waitcnt lgkmcnt(0)")
    srd(A, 60, 56, 256)
    cst(A,0); cst(A,1); cst(A,2)
    A("s_cmp_ge_u32 s2, 37")
    A("s_cbranch_scc1 Lc23_s3")
    body_s2(A, "Lc23_sig")
    A.label("Lc23_sig")
    cst(A,1)
    A("s_waitcnt vmcnt(0)")
    cst(A,2)
    A("s_barrier")
    A("s_cmp_lg_u32 s24, 0")
    A("s_cbranch_scc1 Lc23_s3")
    A("v_mov_b32 v250, 1"); A("v_mov_b32 v251, 0")
    A("s_mov_b64 exec, 1")
    A("buffer_atomic_add v250, v251, s[60:63], 0 offen sc1")
    A("s_mov_b64 exec, -1")
    A.label("Lc23_s3")
    A("s_mov_b32 s42, s58"); A("s_mov_b32 s43, s59")
    def wait_code(A, tmp):
        A("s_cmp_lg_u32 s24, 0")
        A("s_cbranch_scc1 Lc23_wd")
        A(f"v_mov_b32 v{tmp}, 0")
        A.label("Lc23_poll")
        A(f"buffer_load_dword v{tmp+1}, v{tmp}, s[60:63], 0 offen sc0 sc1")
        A("s_waitcnt vmcnt(0)")
        A(f"v_readfirstlane_b32 s3, v{tmp+1}")
        A("s_cmp_ge_u32 s3, 37")
        A("s_cbranch_scc1 Lc23_wd")
        A("s_sleep 2")
        A("s_branch Lc23_poll")
        A.label("Lc23_wd")
        A("s_barrier")
    body_s3(A, wait_code)

def body_wrepack(A):
    T = 8
    A("s_load_dwordx4 s[56:59], s[0:1], 56")
    A("s_load_dwordx2 s[46:47], s[0:1], 88")
    A("v_lshrrev_b32 v1, 6, v0")
    A("v_readfirstlane_b32 s24, v1")
    A("s_waitcnt lgkmcnt(0)")
    srd(A, 60, 56, 2048*289*2)
    srd(A, 64, 58, 2048*289*2)
    srd(A, 68, 46, 289*8192, WS_WP)
    A(f"v_and_b32 v{T}, 63, v0")
    for j in range(4):
        WR = 16 + 16*j
        A("s_lshl_b32 s3, s2, 5"); A("s_lshl_b32 s4, s24, 2"); A("s_add_u32 s3, s3, s4"); A(f"s_add_u32 s3, s3, {j}")
        A("s_and_b32 s4, s3, 31")
        A("s_lshr_b32 s5, s3, 5")
        A("s_lshr_b32 s6, s5, 5")
        A("s_bfe_u32 s7, s5, 0x20003")
        A("s_lshl_b32 s6, s6, 2"); A("s_add_u32 s6, s6, s7"); A("s_lshl_b32 s6, s6, 10")
        A("s_bfe_u32 s7, s5, 0x10002"); A("s_lshl_b32 s7, s7, 5"); A("s_add_u32 s7, s7, s4"); A("s_lshl_b32 s7, s7, 4")
        A("s_add_u32 s6, s6, s7")
        A("s_and_b32 s7, s5, 3"); A("s_lshl_b32 s7, s7, 2"); A(f"s_add_u32 s{72+j}, s6, s7")
        A("s_mul_i32 s4, s3, 578")
        for it in range(5):
            A(f"v_add_u32 v{T+1}, {64*it}, v{T}")
            A(f"v_cmp_gt_u32 vcc, 0x121, v{T+1}")
            A(f"v_mov_b32 v{T+2}, 0x7f000000")
            A(f"v_lshlrev_b32 v{T+3}, 1, v{T+1}")
            A(f"v_cndmask_b32 v{T+3}, v{T+2}, v{T+3}, vcc")
            A(f"v_lshlrev_b32 v{T+1}, 13, v{T+1}")
            A(f"v_cndmask_b32 v{WR+3*it}, v{T+2}, v{T+1}, vcc")
            A(f"buffer_load_ushort v{WR+1+3*it}, v{T+3}, s[60:63], s4 offen")
            A(f"buffer_load_ushort v{WR+2+3*it}, v{T+3}, s[64:67], s4 offen")
    A("s_waitcnt vmcnt(0)")
    for j in range(4):
        WR = 16 + 16*j
        for it in range(5):
            A(f"v_lshl_or_b32 v{WR+1+3*it}, v{WR+2+3*it}, 16, v{WR+1+3*it}")
            A(f"buffer_store_dword v{WR+1+3*it}, v{WR+3*it}, s[68:71], s{72+j} offen")
    A("s_endpgm")

def body_s1v2(A):
    ACC = 0; FD = 16; FC = 24; AD = 32; VO = 36; T = 48
    CB = 98304
    A("s_load_dwordx2 s[40:41], s[0:1], 48")
    A("s_load_dwordx2 s[46:47], s[0:1], 88")
    A("v_lshrrev_b32 v1, 6, v0")
    A("v_readfirstlane_b32 s24, v1")
    A("s_waitcnt lgkmcnt(0)")
    A("s_and_b32 s25, s2, 7"); A("s_lshr_b32 s26, s2, 3")
    srd(A, 8, 40, 2048*1152)
    srd(A, 12, 46, 576*4096, WS_X1)
    A(f"v_and_b32 v{T}, 63, v0")
    A(f"v_and_b32 v{T+1}, 31, v0")
    A(f"v_bfe_u32 v{T+2}, v0, 5, 1")
    A(f"v_lshrrev_b32 v{T+5}, 3, v{T}")
    A(f"v_and_b32 v{T+6}, 7, v{T}")
    A("s_lshl_b32 s3, s25, 3"); A("s_add_u32 s27, s3, s24")
    A("s_movk_i32 s4, 1152")
    for i in range(4):
        A(f"v_add_u32 v{T+7}, {i*8}, v{T+5}")
        A(f"v_bfe_u32 v{T+8}, v{T+7}, 1, 3")
        A(f"v_xor_b32 v{T+8}, v{T+8}, v{T+6}")
        A(f"v_lshlrev_b32 v{T+7}, 6, v{T+7}")
        A(f"v_add_u32 v{T+7}, s27, v{T+7}")
        A(f"v_mul_lo_u32 v{T+7}, v{T+7}, s4")
        A(f"v_lshl_add_u32 v{VO+i}, v{T+8}, 4, v{T+7}")
    A("s_mul_i32 s28, s24, 12288")
    def dma(st):
        A(f"s_mov_b32 s30, {st*128}")
        for i in range(4):
            A(f"s_add_u32 m0, s28, {(st%3)*4096 + i*1024}")
            A(f"buffer_load_dwordx4 v{VO+i}, s[8:11], s30 offen lds")
    dma(0); dma(1); dma(2)
    A(f"v_lshlrev_b32 v{T+3}, 7, v{T+1}")
    A(f"v_add_u32 v{T+3}, s28, v{T+3}")
    A(f"v_bfe_u32 v{T+4}, v0, 1, 3")
    for ks in range(4):
        A(f"v_or_b32 v{T+5}, {2*ks}, v{T+2}")
        A(f"v_xor_b32 v{T+5}, v{T+5}, v{T+4}")
        A(f"v_lshl_add_u32 v{AD+ks}, v{T+5}, 4, v{T+3}")
    A("s_mov_b32 s36, %d" % f2u(1.0/576.0)); A("s_movk_i32 s37, 576"); A("s_mov_b32 s38, 7456541")
    A(f"v_lshlrev_b32 v{T+20}, 4, v{T}")
    A("s_lshl_b32 s3, s26, 5")
    A(f"v_add_u32 v{T+3}, s3, v{T+1}")
    A(f"v_cmp_lt_u32 vcc, 288, v{T+3}")
    A(f"v_subrev_u32 v{T+4}, 288, v{T+3}")
    A(f"v_cndmask_b32 v{T+9}, v{T+3}, v{T+4}, vcc")
    A(f"v_mov_b32 v{T+5}, 0"); A(f"v_mov_b32 v{T+6}, 0x3e800000")
    A(f"v_cndmask_b32 v{T+10}, v{T+5}, v{T+6}, vcc")
    ZC, ZS = T+24, T+32; RC, RS = T+21, T+22
    A("s_lshl_b32 s6, s24, 4")
    for jj in range(8):
        A(f"v_lshl_add_u32 v{T+11}, v{T+2}, 3, {jj}")
        A(f"v_add_u32 v{T+11}, s6, v{T+11}")
        A(f"v_mul_u32_u24 v{T+11}, v{T+11}, v{T+9}")
        mod576(A, T+11, T+11, T+12)
        A(f"v_cvt_f32_u32 v{T+11}, v{T+11}")
        A(f"v_fma_f32 v{T+11}, v{T+11}, s36, v{T+10}")
        A(f"v_cos_f32 v{ZC+jj}, v{T+11}")
        A(f"v_sin_f32 v{ZS+jj}, v{T+11}")
    A(f"v_lshlrev_b32 v{T+11}, 7, v{T+9}")
    mod576(A, T+11, T+11, T+12)
    A(f"v_cvt_f32_u32 v{T+11}, v{T+11}")
    A(f"v_mul_f32 v{T+11}, s36, v{T+11}")
    A(f"v_cos_f32 v{RC}, v{T+11}"); A(f"v_sin_f32 v{RS}, v{T+11}")
    for n in range(5):
        if n == 4:
            A("s_cmp_ge_u32 s24, 4"); A("s_cbranch_scc1 Ls1v_gd")
        for p in range(4):
            A(f"v_cvt_pk_bf16_f32 v{T+40+p}, v{ZC+2*p}, v{ZC+2*p+1}")
        A("s_lshl_b32 s3, s24, 10"); A(f"s_add_u32 s3, s3, {CB + 8*n*1024}")
        A(f"v_add_u32 v{T+11}, s3, v{T+20}")
        A(f"ds_write_b128 v{T+11}, {v(T+40,4)}")
        if n < 4:
            for jj in range(8):
                A(f"v_mul_f32 v{T+12}, v{ZC+jj}, v{RC}")
                A(f"v_mul_f32 v{T+13}, v{ZS+jj}, v{RC}")
                A(f"v_fma_f32 v{T+12}, -v{ZS+jj}, v{RS}, v{T+12}")
                A(f"v_fma_f32 v{ZS+jj}, v{ZC+jj}, v{RS}, v{T+13}")
                A(f"v_mov_b32 v{ZC+jj}, v{T+12}")
    A.label("Ls1v_gd")
    A(f"v_add_u32 v{T+21}, {CB}, v{T+20}")
    A("s_waitcnt lgkmcnt(0)")
    A("s_barrier")
    for st in range(9):
        out = min(8, st+2) - st
        A(f"s_waitcnt vmcnt({4*out})")
        for ks in range(4):
            kk = st*4 + ks
            A(f"ds_read_b128 {v(FD+4*(ks&1),4)}, v{AD+ks} offset:{(st%3)*4096}")
            A(f"ds_read_b128 {v(FC+4*(ks&1),4)}, v{T+21} offset:{kk*1024}")
            if ks > 0:
                p = (ks-1)&1
                A("s_waitcnt lgkmcnt(2)")
                c = "0" if kk-1 == 0 else v(ACC,16)
                A(f"{MFMA} {v(ACC,16)}, {v(FD+4*p,4)}, {v(FC+4*p,4)}, {c}")
        A("s_waitcnt lgkmcnt(0)")
        A(f"{MFMA} {v(ACC,16)}, {v(FD+4,4)}, {v(FC+4,4)}, {v(ACC,16)}")
        if st + 3 < 9: dma(st+3)
    A("s_lshr_b32 s4, s27, 5"); A("s_lshl_b32 s4, s4, 11")
    A("s_and_b32 s3, s27, 31"); A("s_lshl_b32 s3, s3, 4"); A("s_add_u32 s3, s3, s4")
    A("s_lshl_b32 s4, s26, 5")
    A(f"v_add_u32 v{T+3}, s4, v{T+1}")
    A(f"v_lshlrev_b32 v{T+3}, 12, v{T+3}")
    A(f"v_lshl_add_u32 v{T+3}, v{T+2}, 9, v{T+3}")
    for p in range(8):
        A(f"v_cvt_pk_bf16_f32 v{T+12+p}, v{ACC+2*p}, v{ACC+2*p+1}")
    A(f"buffer_store_dwordx4 {v(T+12,4)}, v{T+3}, s[12:15], s3 offen")
    A(f"buffer_store_dwordx4 {v(T+16,4)}, v{T+3}, s[12:15], s3 offen offset:1024")
    A("s_endpgm")

def body_wt(A):
    T = 8
    A("s_load_dwordx4 s[56:59], s[0:1], 56")
    A("s_load_dwordx2 s[46:47], s[0:1], 88")
    A("v_lshrrev_b32 v1, 6, v0")
    A("v_readfirstlane_b32 s24, v1")
    A("s_waitcnt lgkmcnt(0)")
    srd(A, 60, 56, 2048*289*2)
    srd(A, 64, 58, 2048*289*2)
    srd(A, 68, 46, 289*8192, WS_WP)
    A(f"v_and_b32 v{T}, 63, v0")
    A(f"v_lshlrev_b32 v{T+1}, 4, v{T}")
    A(f"s_mul_i32 s5, s2, {64*578}")
    for n in range(5):
        if n == 4:
            A("s_cmp_ge_u32 s24, 5"); A("s_cbranch_scc1 Lwt_l")
        A(f"s_lshl_b32 s3, s24, 10"); A(f"s_add_u32 s3, s3, {8*n*1024}")
        A("s_add_u32 s4, s3, s5")
        A("s_mov_b32 m0, s3")
        A(f"buffer_load_dwordx4 v{T+1}, s[60:63], s4 offen lds")
        A("s_add_u32 m0, s3, 40960")
        A(f"buffer_load_dwordx4 v{T+1}, s[64:67], s4 offen lds")
    A.label("Lwt_l")
    A(f"v_mul_u32_u24 v{T+2}, 578, v{T}")
    A("s_lshl_b32 s3, s24, 1")
    A(f"v_add_u32 v{T+2}, s3, v{T+2}")
    A(f"v_lshlrev_b32 v{T+3}, 2, v{T}")
    A("s_lshl_b32 s6, s2, 8")
    A("s_lshl_b32 s3, s24, 13"); A("s_add_u32 s6, s6, s3")
    A("s_waitcnt vmcnt(0)")
    A("s_barrier")
    for n in range(37):
        A(f"ds_read_u16 v{16+2*n}, v{T+2} offset:{16*n}")
        A(f"ds_read_u16 v{17+2*n}, v{T+2} offset:{40960+16*n}")
        if n % 7 == 6: A("s_waitcnt lgkmcnt(0)")
    A("s_waitcnt lgkmcnt(0)")
    for n in range(37):
        if n == 36:
            A("s_cmp_ge_u32 s24, 1"); A("s_cbranch_scc1 Lwt_x")
        A(f"v_lshl_or_b32 v{16+2*n}, v{17+2*n}, 16, v{16+2*n}")
        A(f"buffer_store_dword v{16+2*n}, v{T+3}, s[68:71], s6 offen")
        A(f"s_add_u32 s6, s6, {8*8192}")
    A.label("Lwt_x")
    A("s_endpgm")
```

```python
from gen_common import *
import os
EXP=os.environ.get('EXP','')

class Gemm:
    FR = 128; AB = 180; AD = 184; VO = 188; T = 192
    def __init__(self, A, tag, BN, nk, ld_act, swap, NST, so, scol, swm, swn, scale=None):
        self.__dict__.update(locals())
        self.WM = 4 if BN == 256 else 2
        self.WN = 2
        self.RB = BN*2
        self.AB_ = 16384
        self.SS = 16384 + 32*self.RB
        self.nacc = self.WM*self.WN*16
        self.fsz = self.WM*4 + self.WN*4
        self.nwi = 2 if BN == 256 else 1
        self.ndma = 2 + self.nwi
        self.nrd = self.WM + 2*self.WN
    def acc(s, a, b): return (a*s.WN + b)*16
    def fa(s, st, a): return s.FR + st*s.fsz + a*4
    def fw(s, st, b): return s.FR + st*s.fsz + s.WM*4 + b*4
    def lane(s):
        A, T = s.A, s.T
        A(f"v_mbcnt_lo_u32_b32 v{T}, -1, 0")
        A(f"v_mbcnt_hi_u32_b32 v{T}, -1, v{T}")
        A(f"v_and_b32 v{T+1}, 31, v{T}")
        A(f"v_bfe_u32 v{T+2}, v{T}, 5, 1")
    def setup(s):
        A, T, AB, VO, WM, WN, RB, BN = s.A, s.T, s.AB, s.VO, s.WM, s.WN, s.RB, s.BN
        s.lane()
        if BN == 256:
            A(f"s_and_b32 s{s.swm}, s22, 1"); A(f"s_lshr_b32 s{s.swn}, s22, 1")
        else:
            A(f"s_and_b32 s{s.swm}, s22, 3"); A(f"s_lshr_b32 s{s.swn}, s22, 2")
        A(f"s_mul_i32 s25, s{s.swm}, {WM*32*64}")
        A(f"v_lshlrev_b32 v{T+3}, 6, v{T+1}")
        A(f"v_add_u32 v{T+3}, s25, v{T+3}")
        A(f"v_bfe_u32 v{T+4}, v{T}, 2, 2")
        for ks in range(2):
            A(f"v_or_b32 v{T+5}, {2*ks}, v{T+2}")
            A(f"v_xor_b32 v{T+5}, v{T+5}, v{T+4}")
            A(f"v_lshl_add_u32 v{AB+ks}, v{T+5}, 4, v{T+3}")
        A(f"v_bfe_u32 v{T+5}, v{T}, 2, 2")
        A(f"v_and_b32 v{T+6}, 3, v{T}")
        A(f"v_bfe_u32 v{T+7}, v{T}, 4, 1")
        A(f"v_lshl_add_u32 v{T+8}, v{T+2}, 3, v{T+5}")
        A(f"v_mul_u32_u24 v{T+8}, {RB}, v{T+8}")
        A(f"v_add_u32 v{T+8}, 16384, v{T+8}")
        A(f"v_and_b32 v{T+9}, 1, v{T+6}")
        A(f"v_lshl_add_u32 v{T+8}, v{T+9}, 3, v{T+8}")
        A(f"v_lshrrev_b32 v{T+9}, 1, v{T+6}")
        A(f"v_lshl_add_u32 v{T+9}, v{T+7}, 1, v{T+9}")
        for b in range(WN):
            A(f"s_lshl_b32 s25, s{s.swn}, 1")
            A(f"s_add_u32 s25, s25, {b}")
            A(f"s_lshl_b32 s25, s25, 2")
            A(f"v_add_u32 v{T+10}, s25, v{T+9}")
            A(f"v_lshlrev_b32 v{T+11}, 2, v{T+5}")
            A(f"v_xor_b32 v{T+10}, v{T+10}, v{T+11}")
            A(f"v_lshl_add_u32 v{AB+2+b}, v{T+10}, 4, v{T+8}")
        A(f"v_lshrrev_b32 v{T+5}, 2, v{T}")
        A(f"v_and_b32 v{T+6}, 3, v{T}")
        A(f"v_bfe_u32 v{T+8}, v{T}, 4, 2")
        A(f"v_xor_b32 v{T+8}, v{T+8}, v{T+6}")
        A(f"s_lshl_b32 s25, s22, 5")
        A(f"s_add_u32 s25, s25, s20")
        A(f"s_mov_b32 s26, {s.ld_act}")
        for i in range(2):
            A(f"v_add_u32 v{T+7}, {i*16}, v{T+5}")
            A(f"v_add_u32 v{T+7}, s25, v{T+7}")
            A(f"v_mul_lo_u32 v{T+7}, v{T+7}, s26")
            A(f"v_lshl_add_u32 v{VO+i}, v{T+8}, 4, v{T+7}")
        A(f"s_lshl_b32 s25, s{s.scol}, 1")
        if BN == 256:
            A(f"v_lshrrev_b32 v{T+5}, 5, v{T}")
            A(f"v_and_b32 v{T+6}, 31, v{T}")
            for i in range(2):
                A(f"v_add_u32 v{T+7}, {2*i}, v{T+5}")
                A(f"v_lshlrev_b32 v{T+8}, 2, v{T+7}")
                A(f"v_xor_b32 v{T+8}, v{T+8}, v{T+6}")
                A(f"s_lshl_b32 s26, s22, 2")
                A(f"v_add_u32 v{T+7}, s26, v{T+7}")
                A(f"v_lshlrev_b32 v{T+7}, 13, v{T+7}")
                A(f"v_lshl_add_u32 v{T+7}, v{T+8}, 4, v{T+7}")
                A(f"v_add_u32 v{VO+2+i}, s25, v{T+7}")
        else:
            A(f"v_lshrrev_b32 v{T+5}, 4, v{T}")
            A(f"v_and_b32 v{T+6}, 15, v{T}")
            A(f"v_lshlrev_b32 v{T+8}, 2, v{T+5}")
            A(f"v_xor_b32 v{T+8}, v{T+8}, v{T+6}")
            A(f"s_lshl_b32 s26, s22, 2")
            A(f"v_add_u32 v{T+7}, s26, v{T+5}")
            A(f"v_lshlrev_b32 v{T+7}, 13, v{T+7}")
            A(f"v_lshl_add_u32 v{T+7}, v{T+8}, 4, v{T+7}")
            A(f"v_add_u32 v{VO+2}, s25, v{T+7}")
        A("s_lshl_b32 s28, s22, 11")
        A(f"s_mul_i32 s29, s22, {4*RB}")
        A(f"s_add_u32 s29, s29, 16384")
        A("s_mov_b32 s30, 0"); A("s_mov_b32 s31, 0"); A("s_mov_b32 s32, 0"); A("s_mov_b32 s33, 0")
    def dma_list(s):
        out = []
        for i in range(2):
            out.append([f"s_add_u32 m0, s28, s32", f"s_add_u32 m0, m0, {i*1024}" if i else None,
                        f"buffer_load_dwordx4 v{s.VO+i}, s[8:11], s30 offen lds"])
        for i in range(s.nwi):
            out.append([f"s_add_u32 m0, s29, s32", f"s_add_u32 m0, m0, {i*1024}" if i else None,
                        f"buffer_load_dwordx4 v{s.VO+2+i}, s[12:15], s31 offen lds"])
        adv = ["s_add_u32 s30, s30, 64", "s_add_u32 s31, s31, 0x40000",
               f"s_add_u32 s32, s32, {s.SS}", f"s_cmp_eq_u32 s32, {s.SS*s.NST}", "s_cselect_b32 s32, 0, s32"]
        return out, adv
    def dma_prologue(s):
        for st in range(s.NST-1):
            o, adv = s.dma_list()
            for g in o:
                for l in g:
                    if l: s.A(l)
            for l in adv: s.A(l)
    def set_addr(s):
        for k in range(4): s.A(f"v_add_u32 v{s.AD+k}, s33, v{s.AB+k}")
        s.A(f"s_add_u32 s33, s33, {s.SS}"); s.A(f"s_cmp_eq_u32 s33, {s.SS*s.NST}"); s.A("s_cselect_b32 s33, 0, s33")
    def reads(s, st, ks):
        out = []
        for a in range(s.WM):
            out.append(f"ds_read_b128 {v(s.fa(st,a),4)}, v{s.AD+ks} offset:{a*2048}")
        for b in range(s.WN):
            for e in range(2):
                out.append(f"ds_read_b64_tr_b16 {v(s.fw(st,b)+2*e,2)}, v{s.AD+2+b} offset:{(16*ks+4*e)*s.RB}")
        return out
    def mfmas(s, st, zero=False):
        out = []
        for a in range(s.WM):
            for b in range(s.WN):
                c = "0" if zero else v(s.acc(a,b),16)
                if s.swap: out.append(f"{MFMA} {v(s.acc(a,b),16)}, {v(s.fa(st,a),4)}, {v(s.fw(st,b),4)}, {c}")
                else:      out.append(f"{MFMA} {v(s.acc(a,b),16)}, {v(s.fw(st,b),4)}, {v(s.fa(st,a),4)}, {c}")
        return out
    def interleave(s, ms, others):
        n = len(ms); k = len(others); j = 0
        for i, m in enumerate(ms):
            s.A(m)
            tgt = (k * (i+1)) // n
            while j < tgt:
                if others[j]: s.A(others[j])
                j += 1
    def main(s, extra_out=0):
        A, NST, ndma, nrd, tag = s.A, s.NST, s.ndma, s.nrd, s.tag
        A(f"s_waitcnt vmcnt({ndma*(NST-2) + extra_out})")
        A("s_barrier")
        s.set_addr()
        for l in s.reads(0, 0): A(l)
        def body(i_from_end, zero=False, extra=0):
            steady = i_from_end >= NST - 1
            for l in s.reads(1, 1): A(l)
            A(f"s_waitcnt lgkmcnt({nrd})")
            s.interleave(s.mfmas(0, zero), [])
            if i_from_end > 0:
                nout = min(NST-2, i_from_end) - 1
                A(f"s_waitcnt vmcnt({ndma*nout + extra}) lgkmcnt(0)")
                A("s_barrier")
                s.set_addr()
                oth = s.reads(0, 0)
                if steady:
                    o, adv = s.dma_list()
                    for g in o: oth += [l for l in g if l]
                    oth += adv
                s.interleave(s.mfmas(1), oth)
            else:
                A("s_waitcnt lgkmcnt(0)")
                s.interleave(s.mfmas(1), [])
        nsteady = s.nk - (NST - 1)
        body(NST, zero=True, extra=extra_out)
        done = 1
        if extra_out:
            for k in range(1, NST-2):
                body(NST, extra=extra_out); done += 1
        A(f"s_mov_b32 s27, {nsteady - done}")
        A.label(f"L{tag}_loop")
        body(NST)
        A("s_sub_u32 s27, s27, 1")
        A("s_cmp_lg_u32 s27, 0")
        A(f"s_cbranch_scc1 L{tag}_loop")
        for r in range(NST-2, -1, -1): body(r)
    def epilogue(s):
        A, T = s.A, s.T
        s.lane()
        A(f"v_lshlrev_b32 v{T}, 4, v{T}")
        PK = s.FR; n = 0
        for a in range(s.WM):
            for b in range(s.WN):
                A(f"s_mul_i32 s25, s{s.swm}, {s.WM}")
                A(f"s_add_u32 s25, s25, {a}")
                A(f"s_lshr_b32 s26, s20, 5")
                A(f"s_add_u32 s25, s25, s26")
                A(f"s_lshl_b32 s26, s{s.swn}, 1")
                A(f"s_add_u32 s26, s26, {b}")
                A(f"s_lshr_b32 s27, s{s.scol}, 5")
                A(f"s_add_u32 s26, s26, s27")
                A(f"s_lshr_b32 s27, s26, 2")
                A(f"s_lshl_b32 s27, s27, 6")
                A(f"s_add_u32 s27, s27, s25")
                A(f"s_lshl_b32 s27, s27, 13")
                A(f"s_and_b32 s26, s26, 3")
                A(f"s_lshl_b32 s26, s26, 11")
                A(f"s_add_u32 s27, s27, s26")
                for t in range(2):
                    base = PK + ((a*s.WN+b)*2 + t) % 8 * 4
                    if s.scale:
                        for j in range(8): A(f"v_mul_f32 v{s.acc(a,b)+8*t+j}, {s.scale}, v{s.acc(a,b)+8*t+j}")
                    for j in range(4):
                        A(f"v_cvt_pk_bf16_f32 v{base+j}, v{s.acc(a,b)+8*t+2*j}, v{s.acc(a,b)+8*t+2*j+1}")
                    A(f"buffer_store_dwordx4 {v(base,4)}, v{T}, s[{s.so}:{s.so+3}], s27 offen offset:{t*1024}")
                    n += 1
        return n

def kernel_proj(A):
    A("s_load_dwordx4 s[36:39], s[0:1], 0")
    A("s_load_dwordx4 s[40:43], s[0:1], 16")
    A("s_load_dwordx2 s[44:45], s[0:1], 32")
    A("s_load_dwordx2 s[46:47], s[0:1], 88")
    A("v_lshrrev_b32 v1, 6, v0")
    A("v_readfirstlane_b32 s22, v1")
    A("s_cmp_ge_u32 s2, 256")
    A("s_cbranch_scc1 Lproj_exit")
    A("s_waitcnt lgkmcnt(0)")
    A("s_and_b32 s4, s2, 7")
    A("s_lshr_b32 s5, s2, 3")
    A("s_and_b32 s6, s5, 7")
    A("s_lshr_b32 s5, s5, 3")
    A("s_lshl_b32 s4, s4, 2")
    A("s_add_u32 s7, s4, s5")
    A("s_lshl_b32 s20, s6, 8")
    A("s_lshl_b32 s68, s7, 7")
    srd(A, 64, 46, 0x1000000, WS_Q)
    Q = Gemm(A, "q", 128, 18, 1152, False, 6, 64, 68, 69, 70, scale="0x3e0293ee")
    def chain(G):
        G.setup(); G.dma_prologue(); G.main()
        A("s_barrier")
        srd(A, 8, 36, 2048*1152)
        srd(A, 12, 40, 576*8192)
        Q.setup(); Q.dma_prologue()
        n = G.epilogue()
        assert n == 16
        A("s_branch Lproj_qmain")
    srd(A, 8, 38, 2048*1024)
    A("s_cmp_ge_u32 s7, 16")
    A("s_cbranch_scc1 Lproj_v")
    srd(A, 12, 42, 512*8192)
    srd(A, 16, 46, 0x1000000, WS_K)
    A("s_lshl_b32 s21, s7, 8")
    chain(Gemm(A, "k", 256, 16, 1024, False, 5, 16, 21, 23, 24))
    A.label("Lproj_v")
    srd(A, 12, 44, 512*8192)
    srd(A, 16, 46, 0x1000000, WS_V)
    A("s_sub_u32 s21, s7, 16")
    A("s_lshl_b32 s21, s21, 8")
    chain(Gemm(A, "v", 256, 16, 1024, True, 5, 16, 21, 23, 24))
    A.label("Lproj_qmain")
    Q.main(extra_out=16)
    Q.epilogue()
    A.label("Lproj_exit")
    A("s_endpgm")
```

```python
import sys, os
from gen_common import *
from gen_proj3 import kernel_proj
from gen_attn3 import kernel_attn
from gen_oproj import kernel_oproj
from gen_fft3 import body_s1, chain23, body_wrepack, body_s1v2, body_wt

def merged(body, n, main, lab):
    def k(A):
        A(f"s_cmp_ge_u32 s2, {n}")
        A(f"s_cbranch_scc1 {lab}")
        body(A)
        A.label(lab)
        A(f"s_sub_u32 s2, s2, {n}")
        main(A)
    return k
def merged_after(main_n, main, body, nb, lab):
    def k(A):
        A(f"s_cmp_lt_u32 s2, {main_n}")
        A(f"s_cbranch_scc1 {lab}")
        A(f"s_sub_u32 s2, s2, {main_n}")
        A(f"s_cmp_ge_u32 s2, {nb}")
        A(f"s_cbranch_scc1 {lab}_x")
        body(A)
        A.label(lab + "_x")
        A("s_endpgm")
        A.label(lab)
        main(A)
    return k
def l1(A):
    A("s_cmp_lt_u32 s2, 256"); A("s_cbranch_scc1 Lm1_main")
    A("s_sub_u32 s2, s2, 256")
    A("s_cmp_lt_u32 s2, 144"); A("s_cbranch_scc1 Lm1_s1")
    A("s_sub_u32 s2, s2, 144")
    A("s_cmp_ge_u32 s2, 32"); A("s_cbranch_scc1 Lm1_x")
    body_wt(A)
    A.label("Lm1_x"); A("s_endpgm")
    A.label("Lm1_s1"); body_s1v2(A)
    A.label("Lm1_main"); kernel_proj(A)
kernels = [("l1_kernel", l1, 256+144+32, 512, 163840, 256),
           ("l2_kernel", kernel_attn, 256, 512, 135168, 256),
           ("l3_kernel", merged(chain23, 48, kernel_oproj, "Lm3"), 192+48, 512, 147456, 256)]
if os.environ.get('NOS1'):
    from gen_fft2 import kernel_s1
    kernels = [("l1_kernel", kernel_proj, 256, 512, 163840, 256), ("s1_kernel", kernel_s1, 72, 512, 65536+73728, 256)] + kernels[1:]
emit_file(kernels, sys.argv[1] if len(sys.argv) > 1 else "cdna_kernels/%s.s" % NAME)
```

```python
import sys
from asmlib import Asm, fix_hazards

NAME = "concat_heads__compressed_kv_cla__spectral_gfnet__prompt"
import os as _os
_B = int(_os.environ.get("WSBASE", "0"), 0)
WS_Q, WS_K, WS_V, WS_C = _B+0x0, _B+0x1000000, _B+0x2000000, _B+0x3000000
WS_X1 = _B+0x4000000
WS_Y  = _B+0x4400000
WS_WP = _B+0x4800000

def v(a, n=1):
    return f"v{a}" if n == 1 else f"v[{a}:{a+n-1}]"
def s(a, n=1):
    return f"s{a}" if n == 1 else f"s[{a}:{a+n-1}]"

MFMA = "v_mfma_f32_32x32x16_bf16"

def srd(A, d, base, nbytes, off=None):
    if off:
        A(f"s_add_u32 s{d}, s{base}, {off}")
        A(f"s_addc_u32 s{d+1}, s{base+1}, 0")
    else:
        A(f"s_mov_b32 s{d}, s{base}")
        A(f"s_mov_b32 s{d+1}, s{base+1}")
    A(f"s_mov_b32 s{d+2}, {nbytes}")
    A(f"s_mov_b32 s{d+3}, 0x00020000")

HEADER = open("cdna_kernels/%s.s.ref" % NAME).read().split("; Override launch geometry")[0]

def emit_file(kernels, path):
    out = [HEADER.rstrip()]
    for (label, fn, grid, block, lds, nv) in kernels:
        out.append(f"; @launch kernel={label} grid=({grid},1,1) block=({block},1,1) lds={lds}")
    out.append('.amdgcn_target "amdgcn-amd-amdhsa--gfx950"')
    out.append(".text")
    seen = set()
    for (label, fn, grid, block, lds, nv) in kernels:
        if label in seen: continue
        seen.add(label)
        A = Asm(); fn(A)
        out.append(f".globl {label}\n.p2align 8\n.type {label},@function\n{label}:")
        out += ["    " + l if not l.endswith(":") else l for l in fix_hazards(A.lines)]
    out.append('.section .rodata,"a"')
    seen = set()
    for (label, fn, grid, block, lds, nv) in kernels:
        if label in seen: continue
        seen.add(label)
        out.append(f""".p2align 6
.amdhsa_kernel {label}
  .amdhsa_next_free_vgpr {nv}
  .amdhsa_next_free_sgpr 102
  .amdhsa_accum_offset {nv}
  .amdhsa_group_segment_fixed_size 0
  .amdhsa_kernarg_size 96
  .amdhsa_user_sgpr_count 2
  .amdhsa_user_sgpr_kernarg_segment_ptr 1
  .amdhsa_system_sgpr_workgroup_id_x 1
.end_amdhsa_kernel""")
    open(path, "w").write("\n".join(out) + "\n")
```

```python
from gen_common import *
import os
EXP=os.environ.get('EXP','')

class Gemm:
    FR = 128; AB = 180; AD = 184; VO = 188; T = 192
    def __init__(self, A, tag, BN, nk, ld_act, swap, NST, so, scol, swm, swn, scale=None):
        self.__dict__.update(locals())
        self.WM = 4 if BN == 256 else 2
        self.WN = 2
        self.RB = BN*2
        self.AB_ = 16384
        self.SS = 16384 + 32*self.RB
        self.nacc = self.WM*self.WN*16
        self.fsz = self.WM*4 + self.WN*4
        self.nwi = 2 if BN == 256 else 1
        self.ndma = 2 + self.nwi
        self.nrd = self.WM + 2*self.WN
    def acc(s, a, b): return (a*s.WN + b)*16
    def fa(s, st, a): return s.FR + st*s.fsz + a*4
    def fw(s, st, b): return s.FR + st*s.fsz + s.WM*4 + b*4
    def lane(s):
        A, T = s.A, s.T
        A(f"v_mbcnt_lo_u32_b32 v{T}, -1, 0")
        A(f"v_mbcnt_hi_u32_b32 v{T}, -1, v{T}")
        A(f"v_and_b32 v{T+1}, 31, v{T}")
        A(f"v_bfe_u32 v{T+2}, v{T}, 5, 1")
    def setup(s):
        A, T, AB, VO, WM, WN, RB, BN = s.A, s.T, s.AB, s.VO, s.WM, s.WN, s.RB, s.BN
        s.lane()
        if BN == 256:
            A(f"s_and_b32 s{s.swm}, s22, 1"); A(f"s_lshr_b32 s{s.swn}, s22, 1")
        else:
            A(f"s_and_b32 s{s.swm}, s22, 3"); A(f"s_lshr_b32 s{s.swn}, s22, 2")
        A(f"s_mul_i32 s25, s{s.swm}, {WM*32*64}")
        A(f"v_lshlrev_b32 v{T+3}, 6, v{T+1}")
        A(f"v_add_u32 v{T+3}, s25, v{T+3}")
        A(f"v_bfe_u32 v{T+4}, v{T}, 2, 2")
        for ks in range(2):
            A(f"v_or_b32 v{T+5}, {2*ks}, v{T+2}")
            A(f"v_xor_b32 v{T+5}, v{T+5}, v{T+4}")
            A(f"v_lshl_add_u32 v{AB+ks}, v{T+5}, 4, v{T+3}")
        A(f"v_bfe_u32 v{T+5}, v{T}, 2, 2")
        A(f"v_and_b32 v{T+6}, 3, v{T}")
        A(f"v_bfe_u32 v{T+7}, v{T}, 4, 1")
        A(f"v_lshl_add_u32 v{T+8}, v{T+2}, 3, v{T+5}")
        A(f"v_mul_u32_u24 v{T+8}, {RB}, v{T+8}")
        A(f"v_add_u32 v{T+8}, 16384, v{T+8}")
        A(f"v_and_b32 v{T+9}, 1, v{T+6}")
        A(f"v_lshl_add_u32 v{T+8}, v{T+9}, 3, v{T+8}")
        A(f"v_lshrrev_b32 v{T+9}, 1, v{T+6}")
        A(f"v_lshl_add_u32 v{T+9}, v{T+7}, 1, v{T+9}")
        for b in range(WN):
            A(f"s_lshl_b32 s25, s{s.swn}, 1")
            A(f"s_add_u32 s25, s25, {b}")
            A(f"s_lshl_b32 s25, s25, 2")
            A(f"v_add_u32 v{T+10}, s25, v{T+9}")
            A(f"v_lshlrev_b32 v{T+11}, 2, v{T+5}")
            A(f"v_xor_b32 v{T+10}, v{T+10}, v{T+11}")
            A(f"v_lshl_add_u32 v{AB+2+b}, v{T+10}, 4, v{T+8}")
        A(f"v_lshrrev_b32 v{T+5}, 2, v{T}")
        A(f"v_and_b32 v{T+6}, 3, v{T}")
        A(f"v_bfe_u32 v{T+8}, v{T}, 4, 2")
        A(f"v_xor_b32 v{T+8}, v{T+8}, v{T+6}")
        A(f"s_lshl_b32 s25, s22, 5")
        A(f"s_add_u32 s25, s25, s20")
        A(f"s_mov_b32 s26, {s.ld_act}")
        for i in range(2):
            A(f"v_add_u32 v{T+7}, {i*16}, v{T+5}")
            A(f"v_add_u32 v{T+7}, s25, v{T+7}")
            A(f"v_mul_lo_u32 v{T+7}, v{T+7}, s26")
            A(f"v_lshl_add_u32 v{VO+i}, v{T+8}, 4, v{T+7}")
        A(f"s_lshl_b32 s25, s{s.scol}, 1")
        if BN == 256:
            A(f"v_lshrrev_b32 v{T+5}, 5, v{T}")
            A(f"v_and_b32 v{T+6}, 31, v{T}")
            for i in range(2):
                A(f"v_add_u32 v{T+7}, {2*i}, v{T+5}")
                A(f"v_lshlrev_b32 v{T+8}, 2, v{T+7}")
                A(f"v_xor_b32 v{T+8}, v{T+8}, v{T+6}")
                A(f"s_lshl_b32 s26, s22, 2")
                A(f"v_add_u32 v{T+7}, s26, v{T+7}")
                A(f"v_lshlrev_b32 v{T+7}, 13, v{T+7}")
                A(f"v_lshl_add_u32 v{T+7}, v{T+8}, 4, v{T+7}")
                A(f"v_add_u32 v{VO+2+i}, s25, v{T+7}")
        else:
            A(f"v_lshrrev_b32 v{T+5}, 4, v{T}")
            A(f"v_and_b32 v{T+6}, 15, v{T}")
            A(f"v_lshlrev_b32 v{T+8}, 2, v{T+5}")
            A(f"v_xor_b32 v{T+8}, v{T+8}, v{T+6}")
            A(f"s_lshl_b32 s26, s22, 2")
            A(f"v_add_u32 v{T+7}, s26, v{T+5}")
            A(f"v_lshlrev_b32 v{T+7}, 13, v{T+7}")
            A(f"v_lshl_add_u32 v{T+7}, v{T+8}, 4, v{T+7}")
            A(f"v_add_u32 v{VO+2}, s25, v{T+7}")
        A("s_lshl_b32 s28, s22, 11")
        A(f"s_mul_i32 s29, s22, {4*RB}")
        A(f"s_add_u32 s29, s29, 16384")
        A("s_mov_b32 s30, 0"); A("s_mov_b32 s31, 0"); A("s_mov_b32 s32, 0"); A("s_mov_b32 s33, 0")
    def dma_list(s):
        out = []
        for i in range(2):
            out.append([f"s_add_u32 m0, s28, s32", f"s_add_u32 m0, m0, {i*1024}" if i else None,
                        f"buffer_load_dwordx4 v{s.VO+i}, s[8:11], s30 offen lds"])
        for i in range(s.nwi):
            out.append([f"s_add_u32 m0, s29, s32", f"s_add_u32 m0, m0, {i*1024}" if i else None,
                        f"buffer_load_dwordx4 v{s.VO+2+i}, s[12:15], s31 offen lds"])
        adv = ["s_add_u32 s30, s30, 64", "s_add_u32 s31, s31, 0x40000",
               f"s_add_u32 s32, s32, {s.SS}", f"s_cmp_eq_u32 s32, {s.SS*s.NST}", "s_cselect_b32 s32, 0, s32"]
        return out, adv
    def dma_prologue(s):
        for st in range(s.NST-1):
            o, adv = s.dma_list()
            for g in o:
                for l in g:
                    if l: s.A(l)
            for l in adv: s.A(l)
    def set_addr(s):
        for k in range(4): s.A(f"v_add_u32 v{s.AD+k}, s33, v{s.AB+k}")
        s.A(f"s_add_u32 s33, s33, {s.SS}"); s.A(f"s_cmp_eq_u32 s33, {s.SS*s.NST}"); s.A("s_cselect_b32 s33, 0, s33")
    def reads(s, st, ks):
        out = []
        for a in range(s.WM):
            out.append(f"ds_read_b128 {v(s.fa(st,a),4)}, v{s.AD+ks} offset:{a*2048}")
        for b in range(s.WN):
            for e in range(2):
                out.append(f"ds_read_b64_tr_b16 {v(s.fw(st,b)+2*e,2)}, v{s.AD+2+b} offset:{(16*ks+4*e)*s.RB}")
        return out
    def mfmas(s, st, zero=False):
        out = []
        for a in range(s.WM):
            for b in range(s.WN):
                c = "0" if zero else v(s.acc(a,b),16)
                if s.swap: out.append(f"{MFMA} {v(s.acc(a,b),16)}, {v(s.fa(st,a),4)}, {v(s.fw(st,b),4)}, {c}")
                else:      out.append(f"{MFMA} {v(s.acc(a,b),16)}, {v(s.fw(st,b),4)}, {v(s.fa(st,a),4)}, {c}")
        return out
    def interleave(s, ms, others):
        n = len(ms); k = len(others); j = 0
        for i, m in enumerate(ms):
            s.A(m)
            tgt = (k * (i+1)) // n
            while j < tgt:
                if others[j]: s.A(others[j])
                j += 1
    def main(s, extra_out=0):
        A, NST, ndma, nrd, tag = s.A, s.NST, s.ndma, s.nrd, s.tag
        A(f"s_waitcnt vmcnt({ndma*(NST-2) + extra_out})")
        A("s_barrier")
        s.set_addr()
        for l in s.reads(0, 0): A(l)
        def body(i_from_end, zero=False, extra=0):
            steady = i_from_end >= NST - 1
            for l in s.reads(1, 1): A(l)
            A(f"s_waitcnt lgkmcnt({nrd})")
            s.interleave(s.mfmas(0, zero), [])
            if i_from_end > 0:
                nout = min(NST-2, i_from_end) - 1
                A(f"s_waitcnt vmcnt({ndma*nout + extra}) lgkmcnt(0)")
                A("s_barrier")
                s.set_addr()
                oth = s.reads(0, 0)
                if steady:
                    o, adv = s.dma_list()
                    for g in o: oth += [l for l in g if l]
                    oth += adv
                s.interleave(s.mfmas(1), oth)
            else:
                A("s_waitcnt lgkmcnt(0)")
                s.interleave(s.mfmas(1), [])
        nsteady = s.nk - (NST - 1)
        body(NST, zero=True, extra=extra_out)
        done = 1
        if extra_out:
            for k in range(1, NST-2):
                body(NST, extra=extra_out); done += 1
        A(f"s_mov_b32 s27, {nsteady - done}")
        A.label(f"L{tag}_loop")
        body(NST)
        A("s_sub_u32 s27, s27, 1")
        A("s_cmp_lg_u32 s27, 0")
        A(f"s_cbranch_scc1 L{tag}_loop")
        for r in range(NST-2, -1, -1): body(r)
    def pack_for_trickle(s):
        A = s.A
        for q in range(7, -1, -1):
            for m in range(7, -1, -1):
                A(f"v_cvt_pk_bf16_f32 v{64+8*q+m}, v{16*q+2*m}, v{16*q+2*m+1}")
        stores = []
        for a in range(s.WM):
            for b in range(s.WN):
                q = a*s.WN + b
                A(f"s_mul_i32 s25, s{s.swm}, {s.WM}")
                A(f"s_add_u32 s25, s25, {a}")
                A(f"s_lshr_b32 s26, s20, 5")
                A(f"s_add_u32 s25, s25, s26")
                A(f"s_lshl_b32 s26, s{s.swn}, 1")
                A(f"s_add_u32 s26, s26, {b}")
                A(f"s_lshr_b32 s27, s{s.scol}, 5")
                A(f"s_add_u32 s26, s26, s27")
                A(f"s_lshr_b32 s27, s26, 2")
                A(f"s_lshl_b32 s27, s27, 6")
                A(f"s_add_u32 s27, s27, s25")
                A(f"s_lshl_b32 s27, s27, 13")
                A(f"s_and_b32 s26, s26, 3")
                A(f"s_lshl_b32 s26, s26, 11")
                A(f"s_add_u32 s{80+q}, s27, s26")
                for t in range(2):
                    stores.append(f"buffer_store_dwordx4 {v(64+8*q+4*t,4)}, v176, s[{s.so}:{s.so+3}], s{80+q} offen offset:{t*1024}" + (" nt" if 'nt' in EXP.split(',') else ""))
        s.lane()
        A(f"v_lshlrev_b32 v176, 4, v{s.T}")
        return stores
    def main_trickle(s, stores):
        A, NST, ndma, nrd, nk = s.A, s.NST, s.ndma, s.nrd, s.nk
        ops = []
        for st in range(NST-1): ops += [('d', st)]*ndma
        def allowed(stage):
            last = max(i for i, o in enumerate(ops) if o == ('d', stage))
            return len(ops) - 1 - last
        stores = list(stores)
        A(f"s_waitcnt vmcnt({allowed(0)})")
        A("s_barrier")
        s.set_addr()
        for l in s.reads(0, 0): A(l)
        for i in range(nk):
            for l in s.reads(1, 1): A(l)
            A(f"s_waitcnt lgkmcnt({nrd})")
            s.interleave(s.mfmas(0, i == 0), [])
            if i < nk - 1:
                A(f"s_waitcnt vmcnt({allowed(i+1)}) lgkmcnt(0)")
                A("s_barrier")
                s.set_addr()
                oth = s.reads(0, 0)
                if i + NST - 1 < nk:
                    o, adv = s.dma_list()
                    for g in o: oth += [l for l in g if l]
                    oth += adv
                    ops += [('d', i+NST-1)]*ndma
                if stores:
                    oth.append(stores.pop(0)); ops.append(('s', 0))
                s.interleave(s.mfmas(1), oth)
            else:
                A("s_waitcnt lgkmcnt(0)")
                s.interleave(s.mfmas(1), [])
        for l in stores: A(l)
    def epilogue(s):
        A, T = s.A, s.T
        s.lane()
        A(f"v_lshlrev_b32 v{T}, 4, v{T}")
        PK = s.FR; n = 0
        for a in range(s.WM):
            for b in range(s.WN):
                A(f"s_mul_i32 s25, s{s.swm}, {s.WM}")
                A(f"s_add_u32 s25, s25, {a}")
                A(f"s_lshr_b32 s26, s20, 5")
                A(f"s_add_u32 s25, s25, s26")
                A(f"s_lshl_b32 s26, s{s.swn}, 1")
                A(f"s_add_u32 s26, s26, {b}")
                A(f"s_lshr_b32 s27, s{s.scol}, 5")
                A(f"s_add_u32 s26, s26, s27")
                A(f"s_lshr_b32 s27, s26, 2")
                A(f"s_lshl_b32 s27, s27, 6")
                A(f"s_add_u32 s27, s27, s25")
                A(f"s_lshl_b32 s27, s27, 13")
                A(f"s_and_b32 s26, s26, 3")
                A(f"s_lshl_b32 s26, s26, 11")
                A(f"s_add_u32 s27, s27, s26")
                for t in range(2):
                    base = PK + ((a*s.WN+b)*2 + t) % 8 * 4
                    if s.scale:
                        for j in range(8): A(f"v_mul_f32 v{s.acc(a,b)+8*t+j}, {s.scale}, v{s.acc(a,b)+8*t+j}")
                    for j in range(4):
                        A(f"v_cvt_pk_bf16_f32 v{base+j}, v{s.acc(a,b)+8*t+2*j}, v{s.acc(a,b)+8*t+2*j+1}")
                    nt = " nt" if 'nt' in EXP.split(',') else ""
                    if 'nostore' in EXP: A(f"buffer_store_dwordx4 {v(base,4)}, v{T}, s[{s.so}:{s.so+3}], s27 offen offset:{t*1024}".replace("s27","s99"))
                    else: A(f"buffer_store_dwordx4 {v(base,4)}, v{T}, s[{s.so}:{s.so+3}], s27 offen offset:{t*1024}{nt}")
                    n += 1
        return n

def kernel_proj(A):
    A("s_mov_b32 s99, 0x7f000000")
    A("s_load_dwordx4 s[36:39], s[0:1], 0")
    A("s_load_dwordx4 s[40:43], s[0:1], 16")
    A("s_load_dwordx2 s[44:45], s[0:1], 32")
    A("s_load_dwordx2 s[46:47], s[0:1], 88")
    A("v_lshrrev_b32 v1, 6, v0")
    A("v_readfirstlane_b32 s22, v1")
    A("s_cmp_ge_u32 s2, 256")
    A("s_cbranch_scc1 Lproj_exit")
    A("s_waitcnt lgkmcnt(0)")
    A("s_and_b32 s4, s2, 7")
    A("s_lshr_b32 s5, s2, 3")
    A("s_and_b32 s6, s5, 7")
    A("s_lshr_b32 s5, s5, 3")
    A("s_lshl_b32 s4, s4, 2")
    A("s_add_u32 s7, s4, s5")
    A("s_lshl_b32 s20, s6, 8")
    A("s_lshl_b32 s68, s7, 7")
    srd(A, 64, 46, 0x1000000, WS_Q)
    Q = Gemm(A, "q", 128, 18, 1152, False, 6, 64, 68, 69, 70, scale="0x3e0293ee")
    st_lists = {}
    def chain(G):
        G.setup(); G.dma_prologue(); G.main()
        A("s_barrier")
        srd(A, 8, 36, 2048*1152)
        srd(A, 12, 40, 576*8192)
        Q.setup(); Q.dma_prologue()
        st_lists[G.tag] = G.pack_for_trickle()
        A("s_branch Lproj_qmain")
    srd(A, 8, 38, 2048*1024)
    A("s_cmp_ge_u32 s7, 16")
    A("s_cbranch_scc1 Lproj_v")
    srd(A, 12, 42, 512*8192)
    srd(A, 16, 46, 0x1000000, WS_K)
    A("s_lshl_b32 s21, s7, 8")
    chain(Gemm(A, "k", 256, 16, 1024, False, 5, 16, 21, 23, 24))
    A.label("Lproj_v")
    srd(A, 12, 44, 512*8192)
    srd(A, 16, 46, 0x1000000, WS_V)
    A("s_sub_u32 s21, s7, 16")
    A("s_lshl_b32 s21, s21, 8")
    chain(Gemm(A, "v", 256, 16, 1024, True, 5, 16, 21, 23, 24))
    A.label("Lproj_qmain")
    assert st_lists["k"] == st_lists["v"]
    Q.main_trickle(st_lists["k"])
    Q.epilogue()
    A.label("Lproj_exit")
    A("s_endpgm")
```

```python
from gen_common import *
import os
EXP=os.environ.get('EXP','')
def cst(A,i):
    if 'cstamp' in EXP:
        A(f's_memrealtime s[{64+2*i}:{65+2*i}]'); A('s_waitcnt lgkmcnt(0)')
from gen_fft2 import f2u, mod576, body_s1

def body_s2(A, done_label):
    C32, S32, N32 = 0, 8, 16
    C64, S64 = 24, 56
    D1 = 88; D2 = 120; ACC = 168; T = 232
    LW, LC, LTB, LTE = 0, 65536, 65536+22528, 65536+22528+16384
    A("s_lshl_b32 s26, s2, 3")
    A("s_add_u32 s25, s26, s24")
    srd(A, 8, 46, 576*4096, WS_X1)
    srd(A, 12, 46, 64*37*1024, WS_Y)
    srd(A, 16, 40, 2048*289*2)
    srd(A, 20, 42, 2048*289*2)
    A(f"v_and_b32 v{T}, 63, v0")
    A(f"v_and_b32 v{T+1}, 31, v0")
    A(f"v_bfe_u32 v{T+2}, v0, 5, 1")
    A(f"v_lshlrev_b32 v{T+4}, 4, v{T}")
    A("s_lshl_b32 s3, s25, 12")
    for k in range(16): A(f"v_mov_b32 v{D1+16+k}, 0")
    A("s_cmp_ge_u32 s25, 289"); A("s_cbranch_scc1 Ls2_noim")
    for k in range(4):
        A(f"buffer_load_dwordx4 {v(D1+4*k,4)}, v{T+4}, s[8:11], s3 offen offset:{k*1024}")
    A("s_cmp_eq_u32 s25, 0"); A("s_cbranch_scc1 Ls2_noim")
    A("s_cmp_eq_u32 s25, 288"); A("s_cbranch_scc1 Ls2_noim")
    A(f"s_add_u32 s3, s3, {288*4096}")
    for k in range(4):
        A(f"buffer_load_dwordx4 {v(D1+16+4*k,4)}, v{T+4}, s[8:11], s3 offen offset:{k*1024}")
    A.label("Ls2_noim")
    srd(A, 16, 46, 289*8192, WS_WP)
    def genpair(idreg_s):
        pass
    def gen_generic(sid):
        A(f"s_cmp_lt_u32 s{sid}, 2")
        A("s_cselect_b32 s6, 31, 63")
        A(f"s_mov_b32 s7, {f2u(1/64)}")
        A(f"s_cselect_b32 s7, {f2u(1/32)}, s7")
        A(f"s_sub_u32 s3, s{sid}, 2")
        A(f"s_cselect_b32 s3, s{sid}, s3")
        A("s_and_b32 s4, s3, 3")
        A("s_lshr_b32 s5, s3, 2")
        A("s_lshl_b32 s5, s5, 5")
        A(f"v_add_u32 v{T+9}, s5, v{T+1}")
        A("s_lshl_b32 s4, s4, 4")
        for jj in range(8):
            b0 = 8*(jj>>2) + (jj&3)
            A(f"v_lshl_add_u32 v{T+10}, v{T+2}, 2, {b0}")
            A(f"v_add_u32 v{T+10}, s4, v{T+10}")
            A(f"v_mul_u32_u24 v{T+10}, v{T+10}, v{T+9}")
            A(f"v_and_b32 v{T+10}, s6, v{T+10}")
            A(f"v_cvt_f32_u32 v{T+10}, v{T+10}")
            A(f"v_mul_f32 v{T+10}, s7, v{T+10}")
            A(f"v_cos_f32 v{D2+jj}, v{T+10}")
            A(f"v_sin_f32 v{D2+8+jj}, v{T+10}")
        for p in range(4):
            A(f"v_cvt_pk_bf16_f32 v{D2+16+p}, v{D2+2*p}, v{D2+2*p+1}")
            A(f"v_cvt_pk_bf16_f32 v{D2+20+p}, v{D2+8+2*p}, v{D2+8+2*p+1}")
        A(f"s_lshl_b32 s3, s{sid}, 11")
        A(f"s_add_u32 s3, s3, {LC}")
        A(f"v_add_u32 v{T+10}, s3, v{T+4}")
        A(f"ds_write_b128 v{T+10}, {v(D2+16,4)}")
        A(f"ds_write_b128 v{T+10}, {v(D2+20,4)} offset:1024")
    A("s_mov_b32 s27, s24")
    gen_generic(27)
    A("s_cmp_ge_u32 s24, 2"); A("s_cbranch_scc1 Ls2_g2")
    A("s_add_u32 s27, s24, 8")
    gen_generic(27)
    A.label("Ls2_g2")
    A(f"v_add_u32 v{T+6}, 32, v{T+1}")
    for n in range(8):
        A(f"s_lshl_b32 s3, s24, 3"); A(f"s_add_u32 s3, s3, {n}")
        A("s_and_b32 s4, s3, 15")
        A("s_and_b32 s5, s4, 3"); A("s_lshr_b32 s6, s4, 2"); A("s_lshl_b32 s6, s6, 3"); A("s_add_u32 s5, s5, s6")
        A("s_bfe_u32 s6, s3, 0x10004")
        A("s_lshr_b32 s7, s3, 5")
        A("s_lshl_b32 s27, s6, 5")
        A("s_cmp_eq_u32 s7, 0")
        A("s_cselect_b32 s28, s27, 0")
        A("s_cselect_b32 s29, 0, s27")
        A("s_add_u32 s5, s5, s28")
        A(f"v_lshlrev_b32 v{T+9}, 2, v{T+2}")
        A(f"v_add_u32 v{T+9}, s5, v{T+9}")
        A(f"v_add_u32 v{T+10}, s29, v{T+1}")
        A(f"v_mul_u32_u24 v{T+9}, v{T+9}, v{T+10}")
        A(f"v_cvt_f32_u32 v{T+9}, v{T+9}")
        A(f"v_mul_f32 v{T+9}, {hex(f2u(1.0/2048))}, v{T+9}")
        A(f"v_cos_f32 v{T+10}, v{T+9}")
        A(f"v_sin_f32 v{T+11}, v{T+9}")
        A("s_lshl_b32 s3, s3, 9")
        A(f"s_add_u32 s3, s3, {LTB}")
        A(f"v_lshrrev_b32 v{T+9}, 1, v{T+4}")
        A(f"v_add_u32 v{T+9}, s3, v{T+9}")
        A(f"ds_write_b64 v{T+9}, {v(T+10,2)}")
    cst(A,6)
    A("s_waitcnt vmcnt(0)")
    cst(A,7)
    A("s_bfe_u32 s4, s24, 0x10002"); A("s_lshl_b32 s3, s4, 9")
    A("s_and_b32 s4, s24, 3"); A("s_lshl_b32 s4, s4, 2"); A("s_add_u32 s3, s3, s4")
    A(f"v_lshlrev_b32 v{T+3}, 13, v{T+2}")
    A(f"v_lshl_add_u32 v{T+3}, v{T+1}, 4, v{T+3}")
    A(f"v_add_u32 v{T+3}, s3, v{T+3}")
    A("s_waitcnt lgkmcnt(0)")
    A("s_barrier")
    cst(A,8)
    A("s_cmp_lt_u32 s25, 289")
    A("s_cbranch_scc1 Ls2_go")
    for r in range(32): A(f"v_mov_b32 v{D1+r}, 0")
    A("s_branch Ls2_fin")
    A.label("Ls2_go")
    A(f"v_add_u32 v{T+5}, {LC}, v{T+4}")
    for tp in range(2):
        A(f"ds_read_b128 {v(C32+4*tp,4)}, v{T+5} offset:{tp*2048}")
        A(f"ds_read_b128 {v(S32+4*tp,4)}, v{T+5} offset:{tp*2048+1024}")
    for k in range(8):
        A(f"ds_read_b128 {v(C64+4*k,4)}, v{T+5} offset:{(2+k)*2048}")
        A(f"ds_read_b128 {v(S64+4*k,4)}, v{T+5} offset:{(2+k)*2048+1024}")
    A("s_waitcnt lgkmcnt(0)")
    for p in range(8): A(f"v_xor_b32 v{N32+p}, 0x80008000, v{S32+p}")
    aR = lambda i: ACC + 16*i
    aI = lambda i: ACC + 32 + 16*i
    A(f"v_lshrrev_b32 v{T+7}, 1, v{T+4}")
    A(f"v_add_u32 v{T+7}, {LTB}, v{T+7}")
    for mt in range(2):
        for t in range(2):
            c = "0" if t == 0 else v(aR(mt),16)
            A(f"{MFMA} {v(aR(mt),16)}, {v(D1+8*mt+4*t,4)}, {v(C32+4*t,4)}, {c}")
            c = "0" if t == 0 else v(aI(mt),16)
            A(f"{MFMA} {v(aI(mt),16)}, {v(D1+16+8*mt+4*t,4)}, {v(C32+4*t,4)}, {c}")
        for t in range(2):
            A(f"{MFMA} {v(aR(mt),16)}, {v(D1+16+8*mt+4*t,4)}, {v(S32+4*t,4)}, {v(aR(mt),16)}")
            A(f"{MFMA} {v(aI(mt),16)}, {v(D1+8*mt+4*t,4)}, {v(N32+4*t,4)}, {v(aI(mt),16)}")
    def twiddle(sign, ebase):
        for i in range(2):
            for r in range(16):
                A(f"ds_read_b64 {v((D1 if i == 0 else D2)+2*r,2)}, v{T+7} offset:{(ebase+16*i+r)*512}")
        A("s_waitcnt lgkmcnt(0)")
        for i in range(2):
            for r in range(16):
                c_, s_ = (D1 if i == 0 else D2)+2*r, (D1 if i == 0 else D2)+2*r+1
                xr, xi = aR(i)+r, aI(i)+r
                t9, t10 = T+8+2*(r&1), T+9+2*(r&1)
                A(f"v_mul_f32 v{t9}, v{xr}, v{c_}")
                A(f"v_mul_f32 v{t10}, v{xi}, v{c_}")
                if sign < 0:
                    A(f"v_fma_f32 v{t9}, v{xi}, v{s_}, v{t9}")
                    A(f"v_fma_f32 v{xi}, -v{xr}, v{s_}, v{t10}")
                else:
                    A(f"v_fma_f32 v{t9}, -v{xi}, v{s_}, v{t9}")
                    A(f"v_fma_f32 v{xi}, v{xr}, v{s_}, v{t10}")
                A(f"v_mov_b32 v{xr}, v{t9}")
    def pack(neg):
        for i in range(2):
            for p in range(8):
                A(f"v_cvt_pk_bf16_f32 v{D2+8*i+p}, v{aR(i)+2*p}, v{aR(i)+2*p+1}")
                A(f"v_cvt_pk_bf16_f32 v{D2+16+8*i+p}, v{aI(i)+2*p}, v{aI(i)+2*p+1}")
                src = D2+8*i+p if neg == "r" else D2+16+8*i+p
                A(f"v_xor_b32 v{D2+32+8*i+p}, 0x80008000, v{src}")
    twiddle(-1, 0)
    pack("r")
    cst(A,9)
    A("s_lshl_b32 s3, s25, 13")
    A(f"v_lshlrev_b32 v{T+5}, 9, v{T+2}")
    A(f"v_lshl_add_u32 v{T+5}, v{T+1}, 2, v{T+5}")
    A(f"v_add_u32 v{T+6}, 4096, v{T+5}")
    for i in range(2):
        for r in range(16):
            A(f"buffer_load_dword v{D1+16*i+r}, v{T+5 if i == 0 else T+6}, s[16:19], s3 offen offset:{((r&3)+8*(r>>2))*128}")
    for m2 in range(2):
        for tp in range(4):
            c = "0" if tp == 0 else v(aR(m2),16)
            A(f"{MFMA} {v(aR(m2),16)}, {v(C64+16*m2+4*tp,4)}, {v(D2+4*tp,4)}, {c}")
            c = "0" if tp == 0 else v(aI(m2),16)
            A(f"{MFMA} {v(aI(m2),16)}, {v(C64+16*m2+4*tp,4)}, {v(D2+16+4*tp,4)}, {c}")
        for tp in range(4):
            A(f"{MFMA} {v(aR(m2),16)}, {v(S64+16*m2+4*tp,4)}, {v(D2+16+4*tp,4)}, {v(aR(m2),16)}")
            A(f"{MFMA} {v(aI(m2),16)}, {v(S64+16*m2+4*tp,4)}, {v(D2+32+4*tp,4)}, {v(aI(m2),16)}")
    A("s_waitcnt vmcnt(0)")
    for i in range(2):
        for r in range(16):
            xr, xi = aR(i)+r, aI(i)+r
            t7, t8, t9, t10 = T+8+4*(r&1), T+9+4*(r&1), T+10+4*(r&1), T+11+4*(r&1)
            A(f"v_lshlrev_b32 v{t7}, 16, v{D1+16*i+r}")
            A(f"v_and_b32 v{t8}, 0xffff0000, v{D1+16*i+r}")
            A(f"v_mul_f32 v{t9}, v{xr}, v{t7}")
            A(f"v_mul_f32 v{t10}, v{xi}, v{t7}")
            A(f"v_fma_f32 v{t9}, -v{xi}, v{t8}, v{t9}")
            A(f"v_fma_f32 v{xi}, v{xr}, v{t8}, v{t10}")
            A(f"v_mov_b32 v{xr}, v{t9}")
    pack("i")
    for nt in range(2):
        for tp in range(4):
            c = "0" if tp == 0 else v(aR(nt),16)
            A(f"{MFMA} {v(aR(nt),16)}, {v(D2+4*tp,4)}, {v(C64+16*nt+4*tp,4)}, {c}")
            c = "0" if tp == 0 else v(aI(nt),16)
            A(f"{MFMA} {v(aI(nt),16)}, {v(D2+16+4*tp,4)}, {v(C64+16*nt+4*tp,4)}, {c}")
        for tp in range(4):
            A(f"{MFMA} {v(aR(nt),16)}, {v(D2+32+4*tp,4)}, {v(S64+16*nt+4*tp,4)}, {v(aR(nt),16)}")
            A(f"{MFMA} {v(aI(nt),16)}, {v(D2+4*tp,4)}, {v(S64+16*nt+4*tp,4)}, {v(aI(nt),16)}")
    cst(A,10)
    twiddle(+1, 32)
    pack("i")
    cst(A,11)
    for nt in range(2):
        for t in range(2):
            c = "0" if t == 0 else v(aR(nt),16)
            A(f"{MFMA} {v(aR(nt),16)}, {v(C32+4*t,4)}, {v(D2+8*nt+4*t,4)}, {c}")
            c = "0" if t == 0 else v(aI(nt),16)
            A(f"{MFMA} {v(aI(nt),16)}, {v(C32+4*t,4)}, {v(D2+16+8*nt+4*t,4)}, {c}")
        for t in range(2):
            A(f"{MFMA} {v(aR(nt),16)}, {v(N32+4*t,4)}, {v(D2+16+8*nt+4*t,4)}, {v(aR(nt),16)}")
            A(f"{MFMA} {v(aI(nt),16)}, {v(S32+4*t,4)}, {v(D2+8*nt+4*t,4)}, {v(aI(nt),16)}")
    for nt in range(2):
        for r in range(16):
            A(f"v_cvt_pk_bf16_f32 v{D1+16*nt+r}, v{aR(nt)+r}, v{aI(nt)+r}")
    A.label("Ls2_fin")
    A("s_barrier")
    for nt in range(2):
        for r in range(16):
            A(f"ds_write_b32 v{T+3}, v{D1+16*nt+r} offset:{((r&3)+8*(r>>2))*2048 + nt*1024}")
    A("s_waitcnt lgkmcnt(0)")
    A("s_barrier")
    A("s_lshl_b32 s3, s24, 13")
    A(f"v_add_u32 v{T+5}, s3, v{T+4}")
    for k in range(8):
        A(f"ds_read_b128 {v(D2+4*k,4)}, v{T+5} offset:{k*1024}")
    A("s_waitcnt lgkmcnt(0)")
    for k in range(8):
        A(f"s_lshl_b32 s3, s24, 3"); A(f"s_add_u32 s3, s3, {k}"); A("s_mul_i32 s3, s3, 37"); A("s_add_u32 s3, s3, s2"); A("s_lshl_b32 s3, s3, 10")
        A(f"buffer_store_dwordx4 {v(D2+4*k,4)}, v{T+4}, s[12:15], s3 offen sc0 sc1")
    A(f"s_branch {done_label}")

def body_s3(A, wait_code):
    ACC = 0
    FD = 48
    FC = 196
    T = 220
    A("s_and_b32 s25, s2, 7")
    A("s_lshr_b32 s26, s2, 3")
    srd(A, 8, 46, 64*37*1024, WS_Y)
    srd(A, 12, 42, 2048*2304)
    A(f"v_mbcnt_lo_u32_b32 v{T}, -1, 0")
    A(f"v_mbcnt_hi_u32_b32 v{T}, -1, v{T}")
    A(f"v_and_b32 v{T+1}, 31, v{T}")
    A(f"v_bfe_u32 v{T+2}, v{T}, 5, 1")
    A(f"v_lshlrev_b32 v{T+20}, 4, v{T}")
    A("s_mov_b32 s36, %d" % f2u(1.0/576.0)); A("s_movk_i32 s37, 576"); A("s_mov_b32 s38, 7456541")
    A(f"s_mov_b32 s39, {f2u(2.0/(2048*576))}")
    A(f"s_mov_b32 s40, {f2u(-2.0/(2048*576))}")
    A("s_barrier")
    ZC, ZS = T+4, T+8
    RC, RS = T+21, T+22
    for c in range(3):
        A("s_mul_i32 s6, s26, 96"); A(f"s_add_u32 s6, s6, {32*c}")
        A(f"v_add_u32 v{T+3}, s6, v{T+1}")
        A("s_lshl_b32 s6, s24, 3")
        for q in range(4):
            A(f"v_lshl_add_u32 v{T+12}, v{T+2}, 2, {q}")
            A(f"v_add_u32 v{T+12}, s6, v{T+12}")
            A(f"v_mul_u32_u24 v{T+12}, v{T+12}, v{T+3}")
            mod576(A, T+12, T+12, T+13)
            A(f"v_cvt_f32_u32 v{T+12}, v{T+12}")
            A(f"v_mul_f32 v{T+12}, s36, v{T+12}")
            A(f"v_cos_f32 v{ZC+q}, v{T+12}")
            A(f"v_sin_f32 v{ZS+q}, v{T+12}")
        A(f"v_lshlrev_b32 v{T+12}, 6, v{T+3}")
        mod576(A, T+12, T+12, T+13)
        A(f"v_cvt_f32_u32 v{T+12}, v{T+12}")
        A(f"v_mul_f32 v{T+12}, s36, v{T+12}")
        A(f"v_cos_f32 v{RC}, v{T+12}")
        A(f"v_sin_f32 v{RS}, v{T+12}")
        for n in range(5):
            if n == 4:
                A("s_cmp_ge_u32 s24, 5"); A(f"s_cbranch_scc1 Ls3_gn{c}")
            for q in range(4):
                A(f"v_mul_f32 v{T+12+2*q}, s39, v{ZC+q}")
                A(f"v_mul_f32 v{T+13+2*q}, s39, -v{ZS+q}") if False else A(f"v_mul_f32 v{T+13+2*q}, s40, v{ZS+q}")
            if n == 0:
                A("s_cmp_lg_u32 s24, 0"); A(f"s_cbranch_scc1 Ls3_g0{c}")
                A(f"v_cmp_eq_u32 vcc, 0, v{T+2}")
                A(f"v_mul_f32 v{T+23}, 0.5, v{T+12}")
                A(f"v_cndmask_b32 v{T+12}, v{T+12}, v{T+23}, vcc")
                A(f"v_mov_b32 v{T+23}, 0")
                A(f"v_cndmask_b32 v{T+13}, v{T+13}, v{T+23}, vcc")
                A.label(f"Ls3_g0{c}")
            if n == 4:
                A("s_cmp_lg_u32 s24, 4"); A(f"s_cbranch_scc1 Ls3_g4{c}")
                A(f"v_cmp_eq_u32 vcc, 0, v{T+2}")
                A(f"v_mul_f32 v{T+23}, 0.5, v{T+12}")
                A(f"v_mov_b32 v{T+24}, 0")
                A(f"v_cndmask_b32 v{T+12}, v{T+24}, v{T+23}, vcc")
                for z in range(13, 20): A(f"v_mov_b32 v{T+z}, 0")
                A.label(f"Ls3_g4{c}")
            for p in range(4):
                A(f"v_cvt_pk_bf16_f32 v{T+28+p}, v{T+12+2*p}, v{T+13+2*p}")
            A(f"s_lshl_b32 s3, s24, 10")
            A(f"s_add_u32 s3, s3, {(c*37+8*n)*1024}")
            A(f"v_add_u32 v{T+23}, s3, v{T+20}")
            A(f"ds_write_b128 v{T+23}, {v(T+28,4)}")
            if n < 4:
                for q in range(4):
                    A(f"v_mul_f32 v{T+12+2*q}, v{ZC+q}, v{RC}")
                    A(f"v_mul_f32 v{T+13+2*q}, v{ZS+q}, v{RC}")
                for q in range(4):
                    A(f"v_fma_f32 v{T+12+2*q}, -v{ZS+q}, v{RS}, v{T+12+2*q}")
                    A(f"v_fma_f32 v{T+13+2*q}, v{ZC+q}, v{RS}, v{T+13+2*q}")
                for q in range(4):
                    A(f"v_mov_b32 v{ZC+q}, v{T+12+2*q}")
                    A(f"v_mov_b32 v{ZS+q}, v{T+13+2*q}")
        A.label(f"Ls3_gn{c}")
    A.label("Ls3_gend")
    for r in range(48): A(f"v_mov_b32 v{ACC+r}, 0")
    A("s_waitcnt lgkmcnt(0)")
    cst(A,3)
    wait_code(A, T+3)
    cst(A,4)
    A("s_lshl_b32 s27, s25, 3"); A("s_add_u32 s27, s27, s24")
    A(f"s_mul_i32 s3, s27, {37*1024}")
    A(f"v_add_u32 v{T+21}, s3, v{T+20}")
    for ks in range(37):
        if ks % 4 == 0 and ks: A(f"v_add_u32 v{T+21}, 4096, v{T+21}")
        A(f"buffer_load_dwordx4 {v(FD+4*ks,4)}, v{T+21}, s[8:11], 0 offen offset:{(ks%4)*1024} sc0 sc1")
    A(f"v_add_u32 v{T+22}, {37*1024}, v{T+20}")
    A(f"v_add_u32 v{T+23}, {74*1024}, v{T+20}")
    for ks in range(37):
        for c in range(3):
            A(f"ds_read_b128 {v(FC+12*(ks&1)+4*c,4)}, v{(T+20, T+22, T+23)[c]} offset:{ks*1024}")
        if ks > 0:
            p = (ks-1)&1
            A(f"s_waitcnt vmcnt({36-(ks-1)}) lgkmcnt(3)")
            for c in range(3):
                A(f"{MFMA} {v(ACC+16*c,16)}, {v(FC+12*p+4*c,4)}, {v(FD+4*(ks-1),4)}, {v(ACC+16*c,16)}")
    A("s_waitcnt vmcnt(0) lgkmcnt(0)")
    for c in range(3):
        A(f"{MFMA} {v(ACC+16*c,16)}, {v(FC+4*c,4)}, {v(FD+4*36,4)}, {v(ACC+16*c,16)}")
    A("s_lshl_b32 s3, s27, 5")
    A(f"v_add_u32 v{T+3}, s3, v{T+1}")
    A("s_movk_i32 s4, 2304")
    A(f"v_mul_lo_u32 v{T+3}, v{T+3}, s4")
    A(f"v_lshl_add_u32 v{T+3}, v{T+2}, 3, v{T+3}")
    A("s_mul_i32 s3, s26, 192"); A("s_add_u32 s3, s3, 1152")
    for c in range(3):
        for p in range(8):
            A(f"v_cvt_pk_bf16_f32 v{T+12+p}, v{ACC+16*c+2*p}, v{ACC+16*c+2*p+1}")
        for b in range(4):
            A(f"buffer_store_dwordx2 {v(T+12+2*b,2)}, v{T+3}, s[12:15], s3 offen offset:{64*c+16*b}")
    if 'cstamp' in EXP:
        A("s_waitcnt vmcnt(0)")
        cst(A,5)
        A("s_add_u32 s48, s46, 0x8000000"); A("s_addc_u32 s49, s47, 0"); A("s_mov_b32 s50, 0x100000"); A("s_mov_b32 s51, 0x00020000")
        for i in range(12): A(f"v_mov_b32 v{i}, s{64+2*i}")
        A("s_lshl_b32 s52, s2, 3"); A("s_add_u32 s52, s52, s24"); A("s_lshl_b32 s52, s52, 6")
        A("v_mov_b32 v20, 0")
        A("buffer_store_dwordx4 v[0:3], v20, s[48:51], s52 offen")
        A("buffer_store_dwordx4 v[4:7], v20, s[48:51], s52 offen offset:16")
        A("buffer_store_dwordx4 v[8:11], v20, s[48:51], s52 offen offset:32")
    A("s_endpgm")

def chain23(A):
    A("s_load_dwordx4 s[40:43], s[0:1], 56")
    A("s_load_dwordx2 s[46:47], s[0:1], 88")
    A("s_load_dwordx2 s[56:57], s[0:1], 80")
    A("s_load_dwordx2 s[58:59], s[0:1], 72")
    A("v_lshrrev_b32 v1, 6, v0")
    A("v_readfirstlane_b32 s24, v1")
    A("s_waitcnt lgkmcnt(0)")
    srd(A, 60, 56, 256)
    cst(A,0); cst(A,1); cst(A,2)
    A("s_cmp_ge_u32 s2, 37")
    A("s_cbranch_scc1 Lc23_s3")
    body_s2(A, "Lc23_sig")
    A.label("Lc23_sig")
    cst(A,1)
    A("s_waitcnt vmcnt(0)")
    cst(A,2)
    A("s_barrier")
    A("s_cmp_lg_u32 s24, 0")
    A("s_cbranch_scc1 Lc23_s3")
    A("v_mov_b32 v250, 1"); A("v_mov_b32 v251, 0")
    A("s_mov_b64 exec, 1")
    A("buffer_atomic_add v250, v251, s[60:63], 0 offen sc1")
    A("s_mov_b64 exec, -1")
    A.label("Lc23_s3")
    A("s_mov_b32 s42, s58"); A("s_mov_b32 s43, s59")
    def wait_code(A, tmp):
        A("s_cmp_lg_u32 s24, 0")
        A("s_cbranch_scc1 Lc23_wd")
        A(f"v_mov_b32 v{tmp}, 0")
        A.label("Lc23_poll")
        A(f"buffer_load_dword v{tmp+1}, v{tmp}, s[60:63], 0 offen sc0 sc1")
        A("s_waitcnt vmcnt(0)")
        A(f"v_readfirstlane_b32 s3, v{tmp+1}")
        A("s_cmp_ge_u32 s3, 37")
        A("s_cbranch_scc1 Lc23_wd")
        A("s_sleep 2")
        A("s_branch Lc23_poll")
        A.label("Lc23_wd")
        A("s_barrier")
    body_s3(A, wait_code)

def body_wrepack(A):
    T = 8
    A("s_load_dwordx4 s[56:59], s[0:1], 56")
    A("s_load_dwordx2 s[46:47], s[0:1], 88")
    A("v_lshrrev_b32 v1, 6, v0")
    A("v_readfirstlane_b32 s24, v1")
    A("s_waitcnt lgkmcnt(0)")
    srd(A, 60, 56, 2048*289*2)
    srd(A, 64, 58, 2048*289*2)
    srd(A, 68, 46, 289*8192, WS_WP)
    A(f"v_and_b32 v{T}, 63, v0")
    for j in range(4):
        WR = 16 + 16*j
        A("s_lshl_b32 s3, s2, 5"); A("s_lshl_b32 s4, s24, 2"); A("s_add_u32 s3, s3, s4"); A(f"s_add_u32 s3, s3, {j}")
        A("s_and_b32 s4, s3, 31")
        A("s_lshr_b32 s5, s3, 5")
        A("s_lshr_b32 s6, s5, 5")
        A("s_bfe_u32 s7, s5, 0x20003")
        A("s_lshl_b32 s6, s6, 2"); A("s_add_u32 s6, s6, s7"); A("s_lshl_b32 s6, s6, 10")
        A("s_bfe_u32 s7, s5, 0x10002"); A("s_lshl_b32 s7, s7, 5"); A("s_add_u32 s7, s7, s4"); A("s_lshl_b32 s7, s7, 4")
        A("s_add_u32 s6, s6, s7")
        A("s_and_b32 s7, s5, 3"); A("s_lshl_b32 s7, s7, 2"); A(f"s_add_u32 s{72+j}, s6, s7")
        A("s_mul_i32 s4, s3, 578")
        for it in range(5):
            A(f"v_add_u32 v{T+1}, {64*it}, v{T}")
            A(f"v_cmp_gt_u32 vcc, 0x121, v{T+1}")
            A(f"v_mov_b32 v{T+2}, 0x7f000000")
            A(f"v_lshlrev_b32 v{T+3}, 1, v{T+1}")
            A(f"v_cndmask_b32 v{T+3}, v{T+2}, v{T+3}, vcc")
            A(f"v_lshlrev_b32 v{T+1}, 13, v{T+1}")
            A(f"v_cndmask_b32 v{WR+3*it}, v{T+2}, v{T+1}, vcc")
            A(f"buffer_load_ushort v{WR+1+3*it}, v{T+3}, s[60:63], s4 offen")
            A(f"buffer_load_ushort v{WR+2+3*it}, v{T+3}, s[64:67], s4 offen")
    A("s_waitcnt vmcnt(0)")
    for j in range(4):
        WR = 16 + 16*j
        for it in range(5):
            A(f"v_lshl_or_b32 v{WR+1+3*it}, v{WR+2+3*it}, 16, v{WR+1+3*it}")
            A(f"buffer_store_dword v{WR+1+3*it}, v{WR+3*it}, s[68:71], s{72+j} offen")
    A("s_endpgm")

def body_s1v2(A):
    ACC = 0; FD = 16; FC = 24; AD = 32; VO = 36; T = 48
    CB = 98304
    A("s_load_dwordx2 s[40:41], s[0:1], 48")
    A("s_load_dwordx2 s[46:47], s[0:1], 88")
    A("v_lshrrev_b32 v1, 6, v0")
    A("v_readfirstlane_b32 s24, v1")
    A("s_waitcnt lgkmcnt(0)")
    A("s_and_b32 s25, s2, 7"); A("s_lshr_b32 s26, s2, 3")
    srd(A, 8, 40, 2048*1152)
    srd(A, 12, 46, 576*4096, WS_X1)
    A(f"v_and_b32 v{T}, 63, v0")
    A(f"v_and_b32 v{T+1}, 31, v0")
    A(f"v_bfe_u32 v{T+2}, v0, 5, 1")
    A(f"v_lshrrev_b32 v{T+5}, 3, v{T}")
    A(f"v_and_b32 v{T+6}, 7, v{T}")
    A("s_lshl_b32 s3, s25, 3"); A("s_add_u32 s27, s3, s24")
    A("s_movk_i32 s4, 1152")
    for i in range(4):
        A(f"v_add_u32 v{T+7}, {i*8}, v{T+5}")
        A(f"v_bfe_u32 v{T+8}, v{T+7}, 1, 3")
        A(f"v_xor_b32 v{T+8}, v{T+8}, v{T+6}")
        A(f"v_lshlrev_b32 v{T+7}, 6, v{T+7}")
        A(f"v_add_u32 v{T+7}, s27, v{T+7}")
        A(f"v_mul_lo_u32 v{T+7}, v{T+7}, s4")
        A(f"v_lshl_add_u32 v{VO+i}, v{T+8}, 4, v{T+7}")
    A("s_mul_i32 s28, s24, 12288")
    def dma(st):
        A(f"s_mov_b32 s30, {st*128}")
        for i in range(4):
            A(f"s_add_u32 m0, s28, {(st%3)*4096 + i*1024}")
            A(f"buffer_load_dwordx4 v{VO+i}, s[8:11], s30 offen lds")
    dma(0); dma(1); dma(2)
    A(f"v_lshlrev_b32 v{T+3}, 7, v{T+1}")
    A(f"v_add_u32 v{T+3}, s28, v{T+3}")
    A(f"v_bfe_u32 v{T+4}, v0, 1, 3")
    for ks in range(4):
        A(f"v_or_b32 v{T+5}, {2*ks}, v{T+2}")
        A(f"v_xor_b32 v{T+5}, v{T+5}, v{T+4}")
        A(f"v_lshl_add_u32 v{AD+ks}, v{T+5}, 4, v{T+3}")
    A("s_mov_b32 s36, %d" % f2u(1.0/576.0)); A("s_movk_i32 s37, 576"); A("s_mov_b32 s38, 7456541")
    A(f"v_lshlrev_b32 v{T+20}, 4, v{T}")
    A("s_lshl_b32 s3, s26, 5")
    A(f"v_add_u32 v{T+3}, s3, v{T+1}")
    A(f"v_cmp_lt_u32 vcc, 288, v{T+3}")
    A(f"v_subrev_u32 v{T+4}, 288, v{T+3}")
    A(f"v_cndmask_b32 v{T+9}, v{T+3}, v{T+4}, vcc")
    A(f"v_mov_b32 v{T+5}, 0"); A(f"v_mov_b32 v{T+6}, 0x3e800000")
    A(f"v_cndmask_b32 v{T+10}, v{T+5}, v{T+6}, vcc")
    ZC, ZS = T+24, T+32; RC, RS = T+21, T+22
    A("s_lshl_b32 s6, s24, 4")
    for jj in range(8):
        A(f"v_lshl_add_u32 v{T+11}, v{T+2}, 3, {jj}")
        A(f"v_add_u32 v{T+11}, s6, v{T+11}")
        A(f"v_mul_u32_u24 v{T+11}, v{T+11}, v{T+9}")
        mod576(A, T+11, T+11, T+12)
        A(f"v_cvt_f32_u32 v{T+11}, v{T+11}")
        A(f"v_fma_f32 v{T+11}, v{T+11}, s36, v{T+10}")
        A(f"v_cos_f32 v{ZC+jj}, v{T+11}")
        A(f"v_sin_f32 v{ZS+jj}, v{T+11}")
    A(f"v_lshlrev_b32 v{T+11}, 7, v{T+9}")
    mod576(A, T+11, T+11, T+12)
    A(f"v_cvt_f32_u32 v{T+11}, v{T+11}")
    A(f"v_mul_f32 v{T+11}, s36, v{T+11}")
    A(f"v_cos_f32 v{RC}, v{T+11}"); A(f"v_sin_f32 v{RS}, v{T+11}")
    for n in range(5):
        if n == 4:
            A("s_cmp_ge_u32 s24, 4"); A("s_cbranch_scc1 Ls1v_gd")
        for p in range(4):
            A(f"v_cvt_pk_bf16_f32 v{T+40+p}, v{ZC+2*p}, v{ZC+2*p+1}")
        A("s_lshl_b32 s3, s24, 10"); A(f"s_add_u32 s3, s3, {CB + 8*n*1024}")
        A(f"v_add_u32 v{T+11}, s3, v{T+20}")
        A(f"ds_write_b128 v{T+11}, {v(T+40,4)}")
        if n < 4:
            for jj in range(8):
                A(f"v_mul_f32 v{T+12}, v{ZC+jj}, v{RC}")
                A(f"v_mul_f32 v{T+13}, v{ZS+jj}, v{RC}")
                A(f"v_fma_f32 v{T+12}, -v{ZS+jj}, v{RS}, v{T+12}")
                A(f"v_fma_f32 v{ZS+jj}, v{ZC+jj}, v{RS}, v{T+13}")
                A(f"v_mov_b32 v{ZC+jj}, v{T+12}")
    A.label("Ls1v_gd")
    A(f"v_add_u32 v{T+21}, {CB}, v{T+20}")
    A("s_waitcnt lgkmcnt(0)")
    A("s_barrier")
    for st in range(9):
        out = min(8, st+2) - st
        A(f"s_waitcnt vmcnt({4*out})")
        for ks in range(4):
            kk = st*4 + ks
            A(f"ds_read_b128 {v(FD+4*(ks&1),4)}, v{AD+ks} offset:{(st%3)*4096}")
            A(f"ds_read_b128 {v(FC+4*(ks&1),4)}, v{T+21} offset:{kk*1024}")
            if ks > 0:
                p = (ks-1)&1
                A("s_waitcnt lgkmcnt(2)")
                c = "0" if kk-1 == 0 else v(ACC,16)
                A(f"{MFMA} {v(ACC,16)}, {v(FD+4*p,4)}, {v(FC+4*p,4)}, {c}")
        A("s_waitcnt lgkmcnt(0)")
        A(f"{MFMA} {v(ACC,16)}, {v(FD+4,4)}, {v(FC+4,4)}, {v(ACC,16)}")
        if st + 3 < 9: dma(st+3)
    A("s_lshr_b32 s4, s27, 5"); A("s_lshl_b32 s4, s4, 11")
    A("s_and_b32 s3, s27, 31"); A("s_lshl_b32 s3, s3, 4"); A("s_add_u32 s3, s3, s4")
    A("s_lshl_b32 s4, s26, 5")
    A(f"v_add_u32 v{T+3}, s4, v{T+1}")
    A(f"v_lshlrev_b32 v{T+3}, 12, v{T+3}")
    A(f"v_lshl_add_u32 v{T+3}, v{T+2}, 9, v{T+3}")
    for p in range(8):
        A(f"v_cvt_pk_bf16_f32 v{T+12+p}, v{ACC+2*p}, v{ACC+2*p+1}")
    A(f"buffer_store_dwordx4 {v(T+12,4)}, v{T+3}, s[12:15], s3 offen")
    A(f"buffer_store_dwordx4 {v(T+16,4)}, v{T+3}, s[12:15], s3 offen offset:1024")
    A("s_endpgm")

def body_wt(A):
    T = 8
    A("s_load_dwordx4 s[56:59], s[0:1], 56")
    A("s_load_dwordx2 s[46:47], s[0:1], 88")
    A("v_lshrrev_b32 v1, 6, v0")
    A("v_readfirstlane_b32 s24, v1")
    A("s_waitcnt lgkmcnt(0)")
    srd(A, 60, 56, 2048*289*2)
    srd(A, 64, 58, 2048*289*2)
    srd(A, 68, 46, 289*8192, WS_WP)
    A(f"v_and_b32 v{T}, 63, v0")
    A(f"v_lshlrev_b32 v{T+1}, 4, v{T}")
    A(f"s_mul_i32 s5, s2, {64*578}")
    for n in range(5):
        if n == 4:
            A("s_cmp_ge_u32 s24, 5"); A("s_cbranch_scc1 Lwt_l")
        A(f"s_lshl_b32 s3, s24, 10"); A(f"s_add_u32 s3, s3, {8*n*1024}")
        A("s_add_u32 s4, s3, s5")
        A("s_mov_b32 m0, s3")
        A(f"buffer_load_dwordx4 v{T+1}, s[60:63], s4 offen lds")
        A("s_add_u32 m0, s3, 40960")
        A(f"buffer_load_dwordx4 v{T+1}, s[64:67], s4 offen lds")
    A.label("Lwt_l")
    A(f"v_mul_u32_u24 v{T+2}, 578, v{T}")
    A("s_lshl_b32 s3, s24, 1")
    A(f"v_add_u32 v{T+2}, s3, v{T+2}")
    A(f"v_lshlrev_b32 v{T+3}, 2, v{T}")
    A("s_lshl_b32 s6, s2, 8")
    A("s_lshl_b32 s3, s24, 13"); A("s_add_u32 s6, s6, s3")
    A("s_waitcnt vmcnt(0)")
    A("s_barrier")
    for n in range(37):
        A(f"ds_read_u16 v{16+2*n}, v{T+2} offset:{16*n}")
        A(f"ds_read_u16 v{17+2*n}, v{T+2} offset:{40960+16*n}")
        if n % 7 == 6: A("s_waitcnt lgkmcnt(0)")
    A("s_waitcnt lgkmcnt(0)")
    for n in range(37):
        if n == 36:
            A("s_cmp_ge_u32 s24, 1"); A("s_cbranch_scc1 Lwt_x")
        A(f"v_lshl_or_b32 v{16+2*n}, v{17+2*n}, 16, v{16+2*n}")
        A(f"buffer_store_dword v{16+2*n}, v{T+3}, s[68:71], s6 offen")
        A(f"s_add_u32 s6, s6, {8*8192}")
    A.label("Lwt_x")
    A("s_endpgm")

def body_prefetch(A):
    A("s_load_dwordx2 s[40:41], s[0:1], 40")
    A("v_lshrrev_b32 v1, 6, v0")
    A("v_readfirstlane_b32 s24, v1")
    A("s_waitcnt lgkmcnt(0)")
    srd(A, 8, 40, 4096*1152)
    A("v_and_b32 v2, 63, v0")
    A("v_lshlrev_b32 v2, 4, v2")
    A("s_mul_i32 s3, s2, 147456")
    A("s_mul_i32 s4, s24, 18432")
    A("s_add_u32 s3, s3, s4")
    A("s_mov_b32 m0, s4")
    for i in range(18):
        A("buffer_load_dwordx4 v2, s[8:11], s3 offen lds")
        A("s_add_u32 s3, s3, 1024")
        A("s_add_u32 m0, m0, 1024")
    A("s_waitcnt vmcnt(0)")
    A("s_endpgm")
```

```python
import sys, os, importlib
from gen_common import *
from gen_proj3 import kernel_proj
import importlib
kernel_attn = importlib.import_module('gen_attn' + os.environ.get('ATTN','3')).kernel_attn
kernel_oproj = importlib.import_module('gen_oproj' + os.environ.get('OPROJ','')).kernel_oproj
from gen_fft3 import body_s1, chain23, body_wrepack, body_s1v2, body_wt, body_prefetch

def merged(body, n, main, lab):
    def k(A):
        A(f"s_cmp_ge_u32 s2, {n}")
        A(f"s_cbranch_scc1 {lab}")
        body(A)
        A.label(lab)
        A(f"s_sub_u32 s2, s2, {n}")
        main(A)
    return k
def merged_after(main_n, main, body, nb, lab):
    def k(A):
        A(f"s_cmp_lt_u32 s2, {main_n}")
        A(f"s_cbranch_scc1 {lab}")
        A(f"s_sub_u32 s2, s2, {main_n}")
        A(f"s_cmp_ge_u32 s2, {nb}")
        A(f"s_cbranch_scc1 {lab}_x")
        body(A)
        A.label(lab + "_x")
        A("s_endpgm")
        A.label(lab)
        main(A)
    return k
def l1(A):
    A("s_cmp_lt_u32 s2, 256"); A("s_cbranch_scc1 Lm1_main")
    A("s_sub_u32 s2, s2, 256")
    A("s_cmp_lt_u32 s2, 144"); A("s_cbranch_scc1 Lm1_s1")
    A("s_sub_u32 s2, s2, 144")
    A("s_cmp_lt_u32 s2, 32"); A("s_cbranch_scc1 Lm1_wt")
    A("s_sub_u32 s2, s2, 32")
    A("s_cmp_ge_u32 s2, 32"); A("s_cbranch_scc1 Lm1_x")
    body_prefetch(A)
    A.label("Lm1_wt")
    body_wt(A)
    A.label("Lm1_x"); A("s_endpgm")
    A.label("Lm1_s1"); body_s1v2(A)
    A.label("Lm1_main"); kernel_proj(A)
kernels = [("l1_kernel", l1, 256+144+64, 512, 163840, 256),
           ("l2_kernel", kernel_attn, 256, 512, 135168, 256),
           ("l3_kernel", merged(chain23, 48, kernel_oproj, "Lm3"), 192+48, 512, 147456, 256)]
if os.environ.get('NOS1'):
    from gen_fft2 import kernel_s1
    kernels = [("l1_kernel", kernel_proj, 256, 512, 163840, 256), ("s1_kernel", kernel_s1, 72, 512, 65536+73728, 256)] + kernels[1:]
if os.environ.get('NULLK'):
    def knull(A): A("s_endpgm")
    kernels = kernels + [("null_kernel", knull, 256, 512, 0, 64)]*int(os.environ['NULLK'])
emit_file(kernels, sys.argv[1] if len(sys.argv) > 1 else "cdna_kernels/%s.s" % NAME)
```

```python
from gen_common import *
import os
EXP=os.environ.get('EXP','')

class Gemm:
    FR = 128; AB = 180; AD = 184; VO = 188; T = 192
    def __init__(self, A, tag, BN, nk, ld_act, swap, NST, so, scol, swm, swn, scale=None):
        self.__dict__.update(locals())
        self.WM = 4 if BN == 256 else 2
        self.WN = 2
        self.RB = BN*2
        self.AB_ = 16384
        self.SS = 16384 + 32*self.RB
        self.nacc = self.WM*self.WN*16
        self.fsz = self.WM*4 + self.WN*4
        self.nwi = 2 if BN == 256 else 1
        self.ndma = 2 + self.nwi
        self.nrd = self.WM + 2*self.WN
    def acc(s, a, b): return (a*s.WN + b)*16
    def fa(s, st, a): return s.FR + st*s.fsz + a*4
    def fw(s, st, b): return s.FR + st*s.fsz + s.WM*4 + b*4
    def lane(s):
        A, T = s.A, s.T
        A(f"v_mbcnt_lo_u32_b32 v{T}, -1, 0")
        A(f"v_mbcnt_hi_u32_b32 v{T}, -1, v{T}")
        A(f"v_and_b32 v{T+1}, 31, v{T}")
        A(f"v_bfe_u32 v{T+2}, v{T}, 5, 1")
    def setup(s):
        A, T, AB, VO, WM, WN, RB, BN = s.A, s.T, s.AB, s.VO, s.WM, s.WN, s.RB, s.BN
        s.lane()
        if BN == 256:
            A(f"s_and_b32 s{s.swm}, s22, 1"); A(f"s_lshr_b32 s{s.swn}, s22, 1")
        else:
            A(f"s_and_b32 s{s.swm}, s22, 3"); A(f"s_lshr_b32 s{s.swn}, s22, 2")
        A(f"s_mul_i32 s25, s{s.swm}, {WM*32*64}")
        A(f"v_lshlrev_b32 v{T+3}, 6, v{T+1}")
        A(f"v_add_u32 v{T+3}, s25, v{T+3}")
        A(f"v_bfe_u32 v{T+4}, v{T}, 2, 2")
        for ks in range(2):
            A(f"v_or_b32 v{T+5}, {2*ks}, v{T+2}")
            A(f"v_xor_b32 v{T+5}, v{T+5}, v{T+4}")
            A(f"v_lshl_add_u32 v{AB+ks}, v{T+5}, 4, v{T+3}")
        A(f"v_bfe_u32 v{T+5}, v{T}, 2, 2")
        A(f"v_and_b32 v{T+6}, 3, v{T}")
        A(f"v_bfe_u32 v{T+7}, v{T}, 4, 1")
        A(f"v_lshl_add_u32 v{T+8}, v{T+2}, 3, v{T+5}")
        A(f"v_mul_u32_u24 v{T+8}, {RB}, v{T+8}")
        A(f"v_add_u32 v{T+8}, 16384, v{T+8}")
        A(f"v_and_b32 v{T+9}, 1, v{T+6}")
        A(f"v_lshl_add_u32 v{T+8}, v{T+9}, 3, v{T+8}")
        A(f"v_lshrrev_b32 v{T+9}, 1, v{T+6}")
        A(f"v_lshl_add_u32 v{T+9}, v{T+7}, 1, v{T+9}")
        for b in range(WN):
            A(f"s_lshl_b32 s25, s{s.swn}, 1")
            A(f"s_add_u32 s25, s25, {b}")
            A(f"s_lshl_b32 s25, s25, 2")
            A(f"v_add_u32 v{T+10}, s25, v{T+9}")
            A(f"v_lshlrev_b32 v{T+11}, 2, v{T+5}")
            A(f"v_xor_b32 v{T+10}, v{T+10}, v{T+11}")
            A(f"v_lshl_add_u32 v{AB+2+b}, v{T+10}, 4, v{T+8}")
        A(f"v_lshrrev_b32 v{T+5}, 2, v{T}")
        A(f"v_and_b32 v{T+6}, 3, v{T}")
        A(f"v_bfe_u32 v{T+8}, v{T}, 4, 2")
        A(f"v_xor_b32 v{T+8}, v{T+8}, v{T+6}")
        A(f"s_lshl_b32 s25, s22, 5")
        A(f"s_add_u32 s25, s25, s20")
        A(f"s_mov_b32 s26, {s.ld_act}")
        for i in range(2):
            A(f"v_add_u32 v{T+7}, {i*16}, v{T+5}")
            A(f"v_add_u32 v{T+7}, s25, v{T+7}")
            A(f"v_mul_lo_u32 v{T+7}, v{T+7}, s26")
            A(f"v_lshl_add_u32 v{VO+i}, v{T+8}, 4, v{T+7}")
        A(f"s_lshl_b32 s25, s{s.scol}, 1")
        if BN == 256:
            A(f"v_lshrrev_b32 v{T+5}, 5, v{T}")
            A(f"v_and_b32 v{T+6}, 31, v{T}")
            for i in range(2):
                A(f"v_add_u32 v{T+7}, {2*i}, v{T+5}")
                A(f"v_lshlrev_b32 v{T+8}, 2, v{T+7}")
                A(f"v_xor_b32 v{T+8}, v{T+8}, v{T+6}")
                A(f"s_lshl_b32 s26, s22, 2")
                A(f"v_add_u32 v{T+7}, s26, v{T+7}")
                A(f"v_lshlrev_b32 v{T+7}, 13, v{T+7}")
                A(f"v_lshl_add_u32 v{T+7}, v{T+8}, 4, v{T+7}")
                A(f"v_add_u32 v{VO+2+i}, s25, v{T+7}")
        else:
            A(f"v_lshrrev_b32 v{T+5}, 4, v{T}")
            A(f"v_and_b32 v{T+6}, 15, v{T}")
            A(f"v_lshlrev_b32 v{T+8}, 2, v{T+5}")
            A(f"v_xor_b32 v{T+8}, v{T+8}, v{T+6}")
            A(f"s_lshl_b32 s26, s22, 2")
            A(f"v_add_u32 v{T+7}, s26, v{T+5}")
            A(f"v_lshlrev_b32 v{T+7}, 13, v{T+7}")
            A(f"v_lshl_add_u32 v{T+7}, v{T+8}, 4, v{T+7}")
            A(f"v_add_u32 v{VO+2}, s25, v{T+7}")
        A("s_lshl_b32 s28, s22, 11")
        A(f"s_mul_i32 s29, s22, {4*RB}")
        A(f"s_add_u32 s29, s29, 16384")
        A("s_mov_b32 s30, 0"); A("s_mov_b32 s31, 0"); A("s_mov_b32 s32, 0"); A("s_mov_b32 s33, 0")
    def dma_list(s):
        out = []
        for i in range(2):
            out.append([f"s_add_u32 m0, s28, s32", f"s_add_u32 m0, m0, {i*1024}" if i else None,
                        f"buffer_load_dwordx4 v{s.VO+i}, s[8:11], s30 offen lds"])
        for i in range(s.nwi):
            out.append([f"s_add_u32 m0, s29, s32", f"s_add_u32 m0, m0, {i*1024}" if i else None,
                        f"buffer_load_dwordx4 v{s.VO+2+i}, s[12:15], s31 offen lds"])
        adv = ["s_add_u32 s30, s30, 64", "s_add_u32 s31, s31, 0x40000",
               f"s_add_u32 s32, s32, {s.SS}", f"s_cmp_eq_u32 s32, {s.SS*s.NST}", "s_cselect_b32 s32, 0, s32"]
        return out, adv
    def dma_prologue(s):
        for st in range(s.NST-1):
            o, adv = s.dma_list()
            for g in o:
                for l in g:
                    if l: s.A(l)
            for l in adv: s.A(l)
    def set_addr(s):
        for k in range(4): s.A(f"v_add_u32 v{s.AD+k}, s33, v{s.AB+k}")
        s.A(f"s_add_u32 s33, s33, {s.SS}"); s.A(f"s_cmp_eq_u32 s33, {s.SS*s.NST}"); s.A("s_cselect_b32 s33, 0, s33")
    def reads(s, st, ks):
        out = []
        for a in range(s.WM):
            out.append(f"ds_read_b128 {v(s.fa(st,a),4)}, v{s.AD+ks} offset:{a*2048}")
        for b in range(s.WN):
            for e in range(2):
                out.append(f"ds_read_b64_tr_b16 {v(s.fw(st,b)+2*e,2)}, v{s.AD+2+b} offset:{(16*ks+4*e)*s.RB}")
        return out
    def mfmas(s, st, zero=False):
        out = []
        for a in range(s.WM):
            for b in range(s.WN):
                c = "0" if zero else v(s.acc(a,b),16)
                if s.swap: out.append(f"{MFMA} {v(s.acc(a,b),16)}, {v(s.fa(st,a),4)}, {v(s.fw(st,b),4)}, {c}")
                else:      out.append(f"{MFMA} {v(s.acc(a,b),16)}, {v(s.fw(st,b),4)}, {v(s.fa(st,a),4)}, {c}")
        return out
    def interleave(s, ms, others):
        n = len(ms); k = len(others); j = 0
        for i, m in enumerate(ms):
            s.A(m)
            tgt = (k * (i+1)) // n
            while j < tgt:
                if others[j]: s.A(others[j])
                j += 1
    def main(s, extra_out=0):
        A, NST, ndma, nrd, tag = s.A, s.NST, s.ndma, s.nrd, s.tag
        A(f"s_waitcnt vmcnt({ndma*(NST-2) + extra_out})")
        A("s_barrier")
        s.set_addr()
        for l in s.reads(0, 0): A(l)
        def body(i_from_end, zero=False, extra=0):
            steady = i_from_end >= NST - 1
            for l in s.reads(1, 1): A(l)
            A(f"s_waitcnt lgkmcnt({nrd})")
            s.interleave(s.mfmas(0, zero), [])
            if i_from_end > 0:
                nout = min(NST-2, i_from_end) - 1
                A(f"s_waitcnt vmcnt({ndma*nout + extra}) lgkmcnt(0)")
                A("s_barrier")
                s.set_addr()
                oth = s.reads(0, 0)
                if steady:
                    o, adv = s.dma_list()
                    for g in o: oth += [l for l in g if l]
                    oth += adv
                s.interleave(s.mfmas(1), oth)
            else:
                A("s_waitcnt lgkmcnt(0)")
                s.interleave(s.mfmas(1), [])
        nsteady = s.nk - (NST - 1)
        body(NST, zero=True, extra=extra_out)
        done = 1
        if extra_out:
            for k in range(1, NST-2):
                body(NST, extra=extra_out); done += 1
        A(f"s_mov_b32 s27, {nsteady - done}")
        A.label(f"L{tag}_loop")
        body(NST)
        A("s_sub_u32 s27, s27, 1")
        A("s_cmp_lg_u32 s27, 0")
        A(f"s_cbranch_scc1 L{tag}_loop")
        for r in range(NST-2, -1, -1): body(r)
    def pack_for_trickle(s):
        A = s.A
        for q in range(7, -1, -1):
            for m in range(7, -1, -1):
                A(f"v_cvt_pk_bf16_f32 v{64+8*q+m}, v{16*q+2*m}, v{16*q+2*m+1}")
        stores = []
        for a in range(s.WM):
            for b in range(s.WN):
                q = a*s.WN + b
                A(f"s_mul_i32 s25, s{s.swm}, {s.WM}")
                A(f"s_add_u32 s25, s25, {a}")
                A(f"s_lshr_b32 s26, s20, 5")
                A(f"s_add_u32 s25, s25, s26")
                A(f"s_lshl_b32 s26, s{s.swn}, 1")
                A(f"s_add_u32 s26, s26, {b}")
                A(f"s_lshr_b32 s27, s{s.scol}, 5")
                A(f"s_add_u32 s26, s26, s27")
                A(f"s_lshr_b32 s27, s26, 2")
                A(f"s_lshl_b32 s27, s27, 6")
                A(f"s_add_u32 s27, s27, s25")
                A(f"s_lshl_b32 s27, s27, 13")
                A(f"s_and_b32 s26, s26, 3")
                A(f"s_lshl_b32 s26, s26, 11")
                A(f"s_add_u32 s{80+q}, s27, s26")
                for t in range(2):
                    stores.append(f"buffer_store_dwordx4 {v(64+8*q+4*t,4)}, v176, s[{s.so}:{s.so+3}], s{80+q} offen offset:{t*1024}" + (" nt" if 'nt' in EXP.split(',') else ""))
        s.lane()
        A(f"v_lshlrev_b32 v176, 4, v{s.T}")
        return stores
    def main_trickle(s, stores):
        A, NST, ndma, nrd, nk = s.A, s.NST, s.ndma, s.nrd, s.nk
        ops = []
        for st in range(NST-1): ops += [('d', st)]*ndma
        def allowed(stage):
            last = max(i for i, o in enumerate(ops) if o == ('d', stage))
            return len(ops) - 1 - last
        stores = list(stores)
        A(f"s_waitcnt vmcnt({allowed(0)})")
        A("s_barrier")
        s.set_addr()
        for l in s.reads(0, 0): A(l)
        for i in range(nk):
            for l in s.reads(1, 1): A(l)
            A(f"s_waitcnt lgkmcnt({nrd})")
            s.interleave(s.mfmas(0, i == 0), [])
            if i < nk - 1:
                A(f"s_waitcnt vmcnt({allowed(i+1)}) lgkmcnt(0)")
                A("s_barrier")
                s.set_addr()
                oth = s.reads(0, 0)
                if i + NST - 1 < nk:
                    o, adv = s.dma_list()
                    for g in o: oth += [l for l in g if l]
                    oth += adv
                    ops += [('d', i+NST-1)]*ndma
                if stores:
                    oth.append(stores.pop(0)); ops.append(('s', 0))
                s.interleave(s.mfmas(1), oth)
            else:
                A("s_waitcnt lgkmcnt(0)")
                s.interleave(s.mfmas(1), [])
        for l in stores: A(l)
    def epilogue(s):
        A, T = s.A, s.T
        s.lane()
        A(f"v_lshlrev_b32 v{T}, 4, v{T}")
        PK = s.FR; n = 0
        for a in range(s.WM):
            for b in range(s.WN):
                A(f"s_mul_i32 s25, s{s.swm}, {s.WM}")
                A(f"s_add_u32 s25, s25, {a}")
                A(f"s_lshr_b32 s26, s20, 5")
                A(f"s_add_u32 s25, s25, s26")
                A(f"s_lshl_b32 s26, s{s.swn}, 1")
                A(f"s_add_u32 s26, s26, {b}")
                A(f"s_lshr_b32 s27, s{s.scol}, 5")
                A(f"s_add_u32 s26, s26, s27")
                A(f"s_lshr_b32 s27, s26, 2")
                A(f"s_lshl_b32 s27, s27, 6")
                A(f"s_add_u32 s27, s27, s25")
                A(f"s_lshl_b32 s27, s27, 13")
                A(f"s_and_b32 s26, s26, 3")
                A(f"s_lshl_b32 s26, s26, 11")
                A(f"s_add_u32 s27, s27, s26")
                for t in range(2):
                    base = PK + ((a*s.WN+b)*2 + t) % 8 * 4
                    if s.scale:
                        for j in range(8): A(f"v_mul_f32 v{s.acc(a,b)+8*t+j}, {s.scale}, v{s.acc(a,b)+8*t+j}")
                    for j in range(4):
                        A(f"v_cvt_pk_bf16_f32 v{base+j}, v{s.acc(a,b)+8*t+2*j}, v{s.acc(a,b)+8*t+2*j+1}")
                    nt = " nt" if 'nt' in EXP.split(',') else ""
                    if 'nostore' in EXP: A(f"buffer_store_dwordx4 {v(base,4)}, v{T}, s[{s.so}:{s.so+3}], s27 offen offset:{t*1024}".replace("s27","s99"))
                    else: A(f"buffer_store_dwordx4 {v(base,4)}, v{T}, s[{s.so}:{s.so+3}], s27 offen offset:{t*1024}{nt}")
                    n += 1
        return n

def kernel_proj(A):
    A("s_mov_b32 s99, 0x7f000000")
    A("s_load_dwordx4 s[36:39], s[0:1], 0")
    A("s_load_dwordx4 s[40:43], s[0:1], 16")
    A("s_load_dwordx2 s[44:45], s[0:1], 32")
    A("s_load_dwordx2 s[46:47], s[0:1], 88")
    A("v_lshrrev_b32 v1, 6, v0")
    A("v_readfirstlane_b32 s22, v1")
    A("s_cmp_ge_u32 s2, 256")
    A("s_cbranch_scc1 Lproj_exit")
    A("s_waitcnt lgkmcnt(0)")
    A("s_and_b32 s4, s2, 7")
    A("s_lshr_b32 s5, s2, 3")
    A("s_and_b32 s6, s5, 7")
    A("s_lshr_b32 s5, s5, 3")
    A("s_lshl_b32 s4, s4, 2")
    A("s_add_u32 s7, s4, s5")
    A("s_lshl_b32 s20, s6, 8")
    A("s_lshl_b32 s68, s7, 7")
    srd(A, 64, 46, 0x1000000, WS_Q)
    if 'nopf' not in EXP:
        A("s_lshl_b32 s25, s2, 3"); A("s_add_u32 s25, s25, s22")
        A("v_and_b32 v200, 63, v0"); A("v_lshlrev_b32 v200, 4, v200")
        r = 204
        for (pb, size) in ((38, 2048*1024), (42, 512*8192), (44, 512*8192), (36, 2048*1152), (40, 576*8192)):
            per = size // 2048
            srd(A, 72, pb, size)
            A(f"s_mul_i32 s26, s25, {per}")
            for i in range((per + 1023)//1024):
                A(f"buffer_load_dwordx4 {v(r,4)}, v200, s[72:75], s26 offen offset:{i*1024}")
                r += 4
    Q = Gemm(A, "q", 128, 18, 1152, False, 6, 64, 68, 69, 70, scale="0x3e0293ee")
    st_lists = {}
    def chain(G):
        G.setup(); G.dma_prologue(); G.main()
        A("s_barrier")
        srd(A, 8, 36, 2048*1152)
        srd(A, 12, 40, 576*8192)
        Q.setup(); Q.dma_prologue()
        st_lists[G.tag] = G.pack_for_trickle()
        A("s_branch Lproj_qmain")
    srd(A, 8, 38, 2048*1024)
    A("s_cmp_ge_u32 s7, 16")
    A("s_cbranch_scc1 Lproj_v")
    srd(A, 12, 42, 512*8192)
    srd(A, 16, 46, 0x1000000, WS_K)
    A("s_lshl_b32 s21, s7, 8")
    chain(Gemm(A, "k", 256, 16, 1024, False, 5, 16, 21, 23, 24))
    A.label("Lproj_v")
    srd(A, 12, 44, 512*8192)
    srd(A, 16, 46, 0x1000000, WS_V)
    A("s_sub_u32 s21, s7, 16")
    A("s_lshl_b32 s21, s21, 8")
    chain(Gemm(A, "v", 256, 16, 1024, True, 5, 16, 21, 23, 24))
    A.label("Lproj_qmain")
    assert st_lists["k"] == st_lists["v"]
    Q.main_trickle(st_lists["k"])
    Q.epilogue()
    A.label("Lproj_exit")
    A("s_endpgm")
```

```python
from gen_common import *
import os
EXP=os.environ.get('EXP','')

class Gemm:
    FR = 128; AB = 180; AD = 184; VO = 188; T = 192
    def __init__(self, A, tag, BN, nk, ld_act, swap, NST, so, scol, swm, swn, scale=None):
        self.__dict__.update(locals())
        self.WM = 4 if BN == 256 else 2
        self.WN = 2
        self.RB = BN*2
        self.AB_ = 16384
        self.SS = 16384 + 32*self.RB
        self.nacc = self.WM*self.WN*16
        self.fsz = self.WM*4 + self.WN*4
        self.nwi = 2 if BN == 256 else 1
        self.ndma = 2 + self.nwi
        self.nrd = self.WM + 2*self.WN
    def acc(s, a, b): return (a*s.WN + b)*16
    def fa(s, st, a): return s.FR + st*s.fsz + a*4
    def fw(s, st, b): return s.FR + st*s.fsz + s.WM*4 + b*4
    def lane(s):
        A, T = s.A, s.T
        A(f"v_mbcnt_lo_u32_b32 v{T}, -1, 0")
        A(f"v_mbcnt_hi_u32_b32 v{T}, -1, v{T}")
        A(f"v_and_b32 v{T+1}, 31, v{T}")
        A(f"v_bfe_u32 v{T+2}, v{T}, 5, 1")
    def setup(s):
        A, T, AB, VO, WM, WN, RB, BN = s.A, s.T, s.AB, s.VO, s.WM, s.WN, s.RB, s.BN
        s.lane()
        if BN == 256:
            A(f"s_and_b32 s{s.swm}, s22, 1"); A(f"s_lshr_b32 s{s.swn}, s22, 1")
        else:
            A(f"s_and_b32 s{s.swm}, s22, 3"); A(f"s_lshr_b32 s{s.swn}, s22, 2")
        A(f"s_mul_i32 s25, s{s.swm}, {WM*32*64}")
        A(f"v_lshlrev_b32 v{T+3}, 6, v{T+1}")
        A(f"v_add_u32 v{T+3}, s25, v{T+3}")
        A(f"v_bfe_u32 v{T+4}, v{T}, 2, 2")
        for ks in range(2):
            A(f"v_or_b32 v{T+5}, {2*ks}, v{T+2}")
            A(f"v_xor_b32 v{T+5}, v{T+5}, v{T+4}")
            A(f"v_lshl_add_u32 v{AB+ks}, v{T+5}, 4, v{T+3}")
        A(f"v_bfe_u32 v{T+5}, v{T}, 2, 2")
        A(f"v_and_b32 v{T+6}, 3, v{T}")
        A(f"v_bfe_u32 v{T+7}, v{T}, 4, 1")
        A(f"v_lshl_add_u32 v{T+8}, v{T+2}, 3, v{T+5}")
        A(f"v_mul_u32_u24 v{T+8}, {RB}, v{T+8}")
        A(f"v_add_u32 v{T+8}, 16384, v{T+8}")
        A(f"v_and_b32 v{T+9}, 1, v{T+6}")
        A(f"v_lshl_add_u32 v{T+8}, v{T+9}, 3, v{T+8}")
        A(f"v_lshrrev_b32 v{T+9}, 1, v{T+6}")
        A(f"v_lshl_add_u32 v{T+9}, v{T+7}, 1, v{T+9}")
        for b in range(WN):
            A(f"s_lshl_b32 s25, s{s.swn}, 1")
            A(f"s_add_u32 s25, s25, {b}")
            A(f"s_lshl_b32 s25, s25, 2")
            A(f"v_add_u32 v{T+10}, s25, v{T+9}")
            A(f"v_lshlrev_b32 v{T+11}, 2, v{T+5}")
            A(f"v_xor_b32 v{T+10}, v{T+10}, v{T+11}")
            A(f"v_lshl_add_u32 v{AB+2+b}, v{T+10}, 4, v{T+8}")
        A(f"v_lshrrev_b32 v{T+5}, 2, v{T}")
        A(f"v_and_b32 v{T+6}, 3, v{T}")
        A(f"v_bfe_u32 v{T+8}, v{T}, 4, 2")
        A(f"v_xor_b32 v{T+8}, v{T+8}, v{T+6}")
        A(f"s_lshl_b32 s25, s22, 5")
        A(f"s_add_u32 s25, s25, s20")
        A(f"s_mov_b32 s26, {s.ld_act}")
        for i in range(2):
            A(f"v_add_u32 v{T+7}, {i*16}, v{T+5}")
            A(f"v_add_u32 v{T+7}, s25, v{T+7}")
            A(f"v_mul_lo_u32 v{T+7}, v{T+7}, s26")
            A(f"v_lshl_add_u32 v{VO+i}, v{T+8}, 4, v{T+7}")
        A(f"s_lshl_b32 s25, s{s.scol}, 1")
        if BN == 256:
            A(f"v_lshrrev_b32 v{T+5}, 5, v{T}")
            A(f"v_and_b32 v{T+6}, 31, v{T}")
            for i in range(2):
                A(f"v_add_u32 v{T+7}, {2*i}, v{T+5}")
                A(f"v_lshlrev_b32 v{T+8}, 2, v{T+7}")
                A(f"v_xor_b32 v{T+8}, v{T+8}, v{T+6}")
                A(f"s_lshl_b32 s26, s22, 2")
                A(f"v_add_u32 v{T+7}, s26, v{T+7}")
                A(f"v_lshlrev_b32 v{T+7}, 13, v{T+7}")
                A(f"v_lshl_add_u32 v{T+7}, v{T+8}, 4, v{T+7}")
                A(f"v_add_u32 v{VO+2+i}, s25, v{T+7}")
        else:
            A(f"v_lshrrev_b32 v{T+5}, 4, v{T}")
            A(f"v_and_b32 v{T+6}, 15, v{T}")
            A(f"v_lshlrev_b32 v{T+8}, 2, v{T+5}")
            A(f"v_xor_b32 v{T+8}, v{T+8}, v{T+6}")
            A(f"s_lshl_b32 s26, s22, 2")
            A(f"v_add_u32 v{T+7}, s26, v{T+5}")
            A(f"v_lshlrev_b32 v{T+7}, 13, v{T+7}")
            A(f"v_lshl_add_u32 v{T+7}, v{T+8}, 4, v{T+7}")
            A(f"v_add_u32 v{VO+2}, s25, v{T+7}")
        A("s_lshl_b32 s28, s22, 11")
        A(f"s_mul_i32 s29, s22, {4*RB}")
        A(f"s_add_u32 s29, s29, 16384")
        A("s_mov_b32 s30, 0"); A("s_mov_b32 s31, 0"); A("s_mov_b32 s32, 0"); A("s_mov_b32 s33, 0")
    def dma_list(s):
        out = []
        for i in range(2):
            out.append([f"s_add_u32 m0, s28, s32", f"s_add_u32 m0, m0, {i*1024}" if i else None,
                        f"buffer_load_dwordx4 v{s.VO+i}, s[8:11], s30 offen lds"])
        for i in range(s.nwi):
            out.append([f"s_add_u32 m0, s29, s32", f"s_add_u32 m0, m0, {i*1024}" if i else None,
                        f"buffer_load_dwordx4 v{s.VO+2+i}, s[12:15], s31 offen lds"])
        adv = ["s_add_u32 s30, s30, 64", "s_add_u32 s31, s31, 0x40000",
               f"s_add_u32 s32, s32, {s.SS}", f"s_cmp_eq_u32 s32, {s.SS*s.NST}", "s_cselect_b32 s32, 0, s32"]
        return out, adv
    def dma_prologue(s):
        for st in range(s.NST-1):
            o, adv = s.dma_list()
            for g in o:
                for l in g:
                    if l: s.A(l)
            for l in adv: s.A(l)
    def set_addr(s):
        for k in range(4): s.A(f"v_add_u32 v{s.AD+k}, s33, v{s.AB+k}")
        s.A(f"s_add_u32 s33, s33, {s.SS}"); s.A(f"s_cmp_eq_u32 s33, {s.SS*s.NST}"); s.A("s_cselect_b32 s33, 0, s33")
    def reads(s, st, ks):
        out = []
        for a in range(s.WM):
            out.append(f"ds_read_b128 {v(s.fa(st,a),4)}, v{s.AD+ks} offset:{a*2048}")
        for b in range(s.WN):
            for e in range(2):
                out.append(f"ds_read_b64_tr_b16 {v(s.fw(st,b)+2*e,2)}, v{s.AD+2+b} offset:{(16*ks+4*e)*s.RB}")
        return out
    def mfmas(s, st, zero=False):
        out = []
        for a in range(s.WM):
            for b in range(s.WN):
                c = "0" if zero else v(s.acc(a,b),16)
                if s.swap: out.append(f"{MFMA} {v(s.acc(a,b),16)}, {v(s.fa(st,a),4)}, {v(s.fw(st,b),4)}, {c}")
                else:      out.append(f"{MFMA} {v(s.acc(a,b),16)}, {v(s.fw(st,b),4)}, {v(s.fa(st,a),4)}, {c}")
        return out
    def interleave(s, ms, others):
        n = len(ms); k = len(others); j = 0
        for i, m in enumerate(ms):
            s.A(m)
            tgt = (k * (i+1)) // n
            while j < tgt:
                if others[j]: s.A(others[j])
                j += 1
    def main(s, extra_out=0):
        A, NST, ndma, nrd, tag = s.A, s.NST, s.ndma, s.nrd, s.tag
        A(f"s_waitcnt vmcnt({ndma*(NST-2) + extra_out})")
        A("s_barrier")
        s.set_addr()
        for l in s.reads(0, 0): A(l)
        def body(i_from_end, zero=False, extra=0):
            steady = i_from_end >= NST - 1
            for l in s.reads(1, 1): A(l)
            A(f"s_waitcnt lgkmcnt({nrd})")
            s.interleave(s.mfmas(0, zero), [])
            if i_from_end > 0:
                nout = min(NST-2, i_from_end) - 1
                A(f"s_waitcnt vmcnt({ndma*nout + extra}) lgkmcnt(0)")
                A("s_barrier")
                s.set_addr()
                oth = s.reads(0, 0)
                if steady:
                    o, adv = s.dma_list()
                    for g in o: oth += [l for l in g if l]
                    oth += adv
                s.interleave(s.mfmas(1), oth)
            else:
                A("s_waitcnt lgkmcnt(0)")
                s.interleave(s.mfmas(1), [])
        nsteady = s.nk - (NST - 1)
        body(NST, zero=True, extra=extra_out)
        done = 1
        if extra_out:
            for k in range(1, NST-2):
                body(NST, extra=extra_out); done += 1
        A(f"s_mov_b32 s27, {nsteady - done}")
        A.label(f"L{tag}_loop")
        body(NST)
        A("s_sub_u32 s27, s27, 1")
        A("s_cmp_lg_u32 s27, 0")
        A(f"s_cbranch_scc1 L{tag}_loop")
        for r in range(NST-2, -1, -1): body(r)
    def pack_for_trickle(s):
        A = s.A
        for q in range(7, -1, -1):
            for m in range(7, -1, -1):
                A(f"v_cvt_pk_bf16_f32 v{64+8*q+m}, v{16*q+2*m}, v{16*q+2*m+1}")
        stores = []
        for a in range(s.WM):
            for b in range(s.WN):
                q = a*s.WN + b
                A(f"s_mul_i32 s25, s{s.swm}, {s.WM}")
                A(f"s_add_u32 s25, s25, {a}")
                A(f"s_lshr_b32 s26, s20, 5")
                A(f"s_add_u32 s25, s25, s26")
                A(f"s_lshl_b32 s26, s{s.swn}, 1")
                A(f"s_add_u32 s26, s26, {b}")
                A(f"s_lshr_b32 s27, s{s.scol}, 5")
                A(f"s_add_u32 s26, s26, s27")
                A(f"s_lshr_b32 s27, s26, 2")
                A(f"s_lshl_b32 s27, s27, 6")
                A(f"s_add_u32 s27, s27, s25")
                A(f"s_lshl_b32 s27, s27, 13")
                A(f"s_and_b32 s26, s26, 3")
                A(f"s_lshl_b32 s26, s26, 11")
                A(f"s_add_u32 s{80+q}, s27, s26")
                for t in range(2):
                    stores.append(f"buffer_store_dwordx4 {v(64+8*q+4*t,4)}, v176, s[{s.so}:{s.so+3}], s{80+q} offen offset:{t*1024}" + (" nt" if 'nt' in EXP.split(',') else ""))
        s.lane()
        A(f"v_lshlrev_b32 v176, 4, v{s.T}")
        return stores
    def main_trickle(s, stores):
        A, NST, ndma, nrd, nk = s.A, s.NST, s.ndma, s.nrd, s.nk
        ops = []
        for st in range(NST-1): ops += [('d', st)]*ndma
        def allowed(stage):
            last = max(i for i, o in enumerate(ops) if o == ('d', stage))
            return len(ops) - 1 - last
        stores = list(stores)
        A(f"s_waitcnt vmcnt({allowed(0)})")
        A("s_barrier")
        s.set_addr()
        for l in s.reads(0, 0): A(l)
        for i in range(nk):
            for l in s.reads(1, 1): A(l)
            A(f"s_waitcnt lgkmcnt({nrd})")
            s.interleave(s.mfmas(0, i == 0), [])
            if i < nk - 1:
                A(f"s_waitcnt vmcnt({allowed(i+1)}) lgkmcnt(0)")
                A("s_barrier")
                s.set_addr()
                oth = s.reads(0, 0)
                if i + NST - 1 < nk:
                    o, adv = s.dma_list()
                    for g in o: oth += [l for l in g if l]
                    oth += adv
                    ops += [('d', i+NST-1)]*ndma
                if stores:
                    oth.append(stores.pop(0)); ops.append(('s', 0))
                s.interleave(s.mfmas(1), oth)
            else:
                A("s_waitcnt lgkmcnt(0)")
                s.interleave(s.mfmas(1), [])
        for l in stores: A(l)
    def epilogue(s):
        A, T = s.A, s.T
        s.lane()
        A(f"v_lshlrev_b32 v{T}, 4, v{T}")
        PK = s.FR; n = 0
        for a in range(s.WM):
            for b in range(s.WN):
                A(f"s_mul_i32 s25, s{s.swm}, {s.WM}")
                A(f"s_add_u32 s25, s25, {a}")
                A(f"s_lshr_b32 s26, s20, 5")
                A(f"s_add_u32 s25, s25, s26")
                A(f"s_lshl_b32 s26, s{s.swn}, 1")
                A(f"s_add_u32 s26, s26, {b}")
                A(f"s_lshr_b32 s27, s{s.scol}, 5")
                A(f"s_add_u32 s26, s26, s27")
                A(f"s_lshr_b32 s27, s26, 2")
                A(f"s_lshl_b32 s27, s27, 6")
                A(f"s_add_u32 s27, s27, s25")
                A(f"s_lshl_b32 s27, s27, 13")
                A(f"s_and_b32 s26, s26, 3")
                A(f"s_lshl_b32 s26, s26, 11")
                A(f"s_add_u32 s27, s27, s26")
                for t in range(2):
                    base = PK + ((a*s.WN+b)*2 + t) % 8 * 4
                    if s.scale:
                        for j in range(8): A(f"v_mul_f32 v{s.acc(a,b)+8*t+j}, {s.scale}, v{s.acc(a,b)+8*t+j}")
                    for j in range(4):
                        A(f"v_cvt_pk_bf16_f32 v{base+j}, v{s.acc(a,b)+8*t+2*j}, v{s.acc(a,b)+8*t+2*j+1}")
                    nt = " nt" if 'nt' in EXP.split(',') else ""
                    if 'nostore' in EXP: A(f"buffer_store_dwordx4 {v(base,4)}, v{T}, s[{s.so}:{s.so+3}], s27 offen offset:{t*1024}".replace("s27","s99"))
                    else: A(f"buffer_store_dwordx4 {v(base,4)}, v{T}, s[{s.so}:{s.so+3}], s27 offen offset:{t*1024}{nt}")
                    n += 1
        return n

def kernel_proj(A):
    A("s_mov_b32 s99, 0x7f000000")
    A("s_load_dwordx4 s[36:39], s[0:1], 0")
    A("s_load_dwordx4 s[40:43], s[0:1], 16")
    A("s_load_dwordx2 s[44:45], s[0:1], 32")
    A("s_load_dwordx2 s[46:47], s[0:1], 88")
    A("v_lshrrev_b32 v1, 6, v0")
    A("v_readfirstlane_b32 s22, v1")
    A("s_cmp_ge_u32 s2, 256")
    A("s_cbranch_scc1 Lproj_exit")
    A("s_waitcnt lgkmcnt(0)")
    A("s_and_b32 s4, s2, 7")
    A("s_lshr_b32 s5, s2, 3")
    A("s_and_b32 s6, s5, 7")
    A("s_lshr_b32 s5, s5, 3")
    A("s_lshl_b32 s4, s4, 2")
    A("s_add_u32 s7, s4, s5")
    A("s_lshl_b32 s20, s6, 8")
    A("s_lshl_b32 s68, s7, 7")
    srd(A, 64, 46, 0x1000000, WS_Q)
    if 'nopf' not in EXP:
        A("s_lshl_b32 s25, s2, 3"); A("s_add_u32 s25, s25, s22")
        A("v_and_b32 v200, 63, v0"); A("v_lshlrev_b32 v200, 4, v200")
        A("s_load_dwordx4 s[76:79], s[0:1], 48")
        A("s_load_dwordx2 s[88:89], s[0:1], 64")
        A("s_waitcnt lgkmcnt(0)")
        r = 204
        for (pb, size) in ((38, 2048*1024), (42, 512*8192), (44, 512*8192), (36, 2048*1152), (40, 576*8192), (76, 2048*1152), (78, 2048*578), (88, 2048*578)):
            per = size // 2048
            srd(A, 72, pb, size)
            A(f"s_mul_i32 s26, s25, {per}")
            for i in range((per + 1023)//1024):
                A(f"buffer_load_dwordx4 {v(r,4)}, v200, s[72:75], s26 offen offset:{i*1024}")
                r = 204 if r >= 248 else r + 4
            if pb == 44 and 'pfwait' in EXP: A("s_waitcnt vmcnt(0)")
    Q = Gemm(A, "q", 128, 18, 1152, False, 6, 64, 68, 69, 70, scale="0x3e0293ee")
    st_lists = {}
    def chain(G):
        G.setup(); G.dma_prologue(); G.main()
        A("s_barrier")
        srd(A, 8, 36, 2048*1152)
        srd(A, 12, 40, 576*8192)
        Q.setup(); Q.dma_prologue()
        st_lists[G.tag] = G.pack_for_trickle()
        A("s_branch Lproj_qmain")
    srd(A, 8, 38, 2048*1024)
    A("s_cmp_ge_u32 s7, 16")
    A("s_cbranch_scc1 Lproj_v")
    srd(A, 12, 42, 512*8192)
    srd(A, 16, 46, 0x1000000, WS_K)
    A("s_lshl_b32 s21, s7, 8")
    chain(Gemm(A, "k", 256, 16, 1024, False, 5, 16, 21, 23, 24))
    A.label("Lproj_v")
    srd(A, 12, 44, 512*8192)
    srd(A, 16, 46, 0x1000000, WS_V)
    A("s_sub_u32 s21, s7, 16")
    A("s_lshl_b32 s21, s21, 8")
    chain(Gemm(A, "v", 256, 16, 1024, True, 5, 16, 21, 23, 24))
    A.label("Lproj_qmain")
    assert st_lists["k"] == st_lists["v"]
    Q.main_trickle(st_lists["k"])
    Q.epilogue()
    A.label("Lproj_exit")
    A("s_endpgm")
```
